```python
import torch

def _softmax(x, axis=-1):
    return torch.softmax(x, dim=axis)
def _gelu(x):
    return torch.nn.functional.gelu(x, approximate="tanh")
def _silu(x):
    return torch.nn.functional.silu(x)
def _sigmoid(x):
    return torch.sigmoid(x)
def _layernorm(x, axis=-1, eps=1e-5):
    m = x.mean(dim=axis, keepdim=True)
    v = x.var(dim=axis, keepdim=True, unbiased=False)
    return (x - m) / torch.sqrt(v + eps)
def _scatter_add(tgt, idx, src, axis=0):
    return tgt.clone().index_add_(axis, idx, src)
def _segment_sum(src, seg, n):
    out = torch.zeros((n,) + src.shape[1:], dtype=src.dtype)
    return out.index_add_(0, seg, src)
def _pad(x, pw):
    flat = tuple(v for pair in reversed(pw) for v in pair)
    return torch.nn.functional.pad(x, flat)

kernel_name = 'standalone__batchnorm__prompt'

def setup_inputs():

    _w = (lambda a: (lambda t: t.to(torch.bfloat16) if t.is_floating_point() else t)(torch.as_tensor(a)))
    B, S, C = 1, 2048, 1024
    K = 3
    return {
        "x": _w((lambda *s: torch.randn(*s, dtype=torch.bfloat16) * 0.05)(B, S, C)),
        "w": _w((lambda *s: torch.randn(*s, dtype=torch.bfloat16) * 0.05)(K, C, C) * (1.0 / (K * C) ** 0.5)),
        "mean": _w((lambda *s: torch.randn(*s, dtype=torch.bfloat16) * 0.05)(C) * 0.1),
        "var": _w(torch.abs((lambda *s: torch.randn(*s, dtype=torch.bfloat16) * 0.05)(C)) + 0.5),
        "g": _w((lambda *s: torch.randn(*s, dtype=torch.bfloat16) * 0.05)(C) + 1.0),
        "b": _w((lambda *s: torch.randn(*s, dtype=torch.bfloat16) * 0.05)(C) * 0.1),
    }

def reference(x, w, mean, var, g, b):
    K = 3
    P = K // 2
    S = x.shape[1]
    xp = _pad(x, ((0, 0), (P, P), (0, 0)))
    y = sum(torch.einsum('bsc,cd->bsd', xp[:, k:k + S, :], w[k]) for k in range(K))
    inv_std = 1.0 / torch.sqrt(var + 1e-5)
    y = (y - mean) * (g * inv_std) + b
    return _silu(y)
```

```python
from gen6 import *
N=None
d1=tables_slot([N]+[s-1 for s in range(1,16)])
B=dict(cap_head=(1,4),lifo=True,roll='whole',parhead=True,Q=3,nslot=36,split15=True,coal=1,lay2=True,xmap=[0,2,1,3,4,6,5,7],E=3,parbar=(3,0),J=[0]*6,tables=d1,LEADM=19,swap=(4,11),codepf=2,barsep=1,GAPB=7,ooo=24)
if __name__=='__main__':
    build_all({'final':dict(verbose=True)},B,'argsf.txt')
```

```python
import sys
KN='standalone__batchnorm__prompt_kernel'
XS=16640; WS=24576; NS=3
XCLS={0:0,3:34,1:66,2:98}
WB=NS*XS; PB=WB+NS*WS; LDS=PB+512

class G:
    def __init__(s): s.L=[]
    def __call__(s,t):
        for l in t.split('\n'):
            l=l.strip()
            if l: s.L.append(l if l.endswith(':') or l.startswith('.') or l.startswith(';') else '    '+l)
    def text(s): return '\n'.join(s.L)+'\n'

def tables_slot(slot):
    T=[]
    for r in range(16):
        o=[s for s in range(16) if s!=r]
        o.insert(r if slot[r] is None else slot[r], r)
        T.append(o)
    return T
TAB_A=tables_slot([None,0,0]+[s-2 for s in range(3,16)])

def isz(l):
    l=l.strip()
    if l.endswith(':') or l.startswith('.') or l.startswith(';'): return 0
    op=l.split()[0]
    if op.startswith(('v_mfma','ds_','buffer_','global_','v_pk_','v_fma_','v_cvt_pk','s_mem','v_writelane','v_readlane','v_lshl_add','s_load')) or 'dpp' in op: return 8
    if '0x' in l: return 8
    return 4

def triples(Q, tail, c6=None):
    T=[]
    n=0
    while n<32-Q:
        if c6 is not None and n>=c6 and n+1<32-Q:
            for f in range(4):
                g0=f%2
                T+=[(n,f,g0),(n+1,f,g0),(n+1,f,1-g0),(n,f,1-g0)]
            n+=2; continue
        for f in range(4):
            for g in ((0,1) if f%2==0 else (1,0)): T.append((n,f,g))
        n+=1
    ks=list(range(32-Q,32))
    if tail=='f':
        h=[n for n in ks if n<30]; l=[n for n in ks if n>=30]
        T+=[(n,0,0) for n in h]+[(n,0,1) for n in reversed(h)]+[(n,0,1) for n in l]+[(n,0,0) for n in reversed(l)]
        for f in (1,2,3):
            g0=(f+1)%2
            T+=[(n,f,g0) for n in ks]+[(n,f,1-g0) for n in reversed(ks)]
    elif tail=='f2':
        h=[n for n in ks if n<30]; l=[n for n in ks if n>=30]
        T+=[(n,0,0) for n in h]+[(n,0,1) for n in reversed(h)]+[(n,1,1) for n in h]
        T+=[(n,0,1) for n in l]+[(n,0,0) for n in reversed(l)]+[(n,1,1) for n in l]+[(n,1,0) for n in reversed(ks)]
        for f in (2,3):
            g0=f%2
            T+=[(n,f,g0) for n in ks]+[(n,f,1-g0) for n in reversed(ks)]
    elif isinstance(tail,(list,tuple)):
        for (f,g,ns) in tail: T+=[(n,f,g) for n in ns]
    return T

def tables_cb(slot, s0):
    T=[]
    for r in range(16):
        base=list(range(16))
        if r&1:
            for s in range(s0,16,2): base[s],base[s+1]=base[s+1],base[s]
        if slot[r] is not None:
            base.remove(r); base.insert(slot[r],r)
        T.append(base)
    return T

def tables_2l(cslot, d1, smin, slowx=True):
    T=[]
    for r in range(20 if slowx else 16):
        o=sorted(range(16),key=lambda s:(s-d1-0.5) if (s>=smin and s%4==r%4) else s)
        if r<16 and cslot[r] is not None:
            o.remove(r); o.insert(cslot[r],r)
        T.append(o)
    return T

def gen(stamps=False, rt=False, diag=None, store_flags='sc0 sc1', prio_c=0, prio_l=1, round_scale=True,
        tables=TAB_A, slowpf=1, kswap=1, E=1, b0mode=2, xmap=0, lstamp=False, lwave=7,
        Q=4, tail='f', LEAD=7, GAPB=6, cap_main=(1,4), cap_tail=(1,4), tail_from=26, cap_head=(2,4), touch=True, lite=False, verbose=False, overfill=0, nslot=46, lifo=False, roll=False, parhead=False, tailpf=0, taild=3, c6=None, head_to=24, split15=False, fake='', coal=0, pre=False, cwave=0, lay2=False, dbgpause={}, dbgwarm=None, parbar=(1,0), J=None, LEADM=None, lm_from=None, swap=None, tap0=False, codepf=0, xex=0, wex=None, jit=None, endwait=False, barsep=0, tapj=0):
    A=G()
    if diag: stamps=True
    A(f"; @launch grid=(256,1,1) block=(512,1,1) lds={LDS}")
    A("""; out[s,d] = silu(bn(sum_t sum_c x[s+t-1,c] * w[t,c,d])),  S=2048, C=D=1024.
;   into a 3-slot LDS ring; s_barrier hands stages over and frees slots.
; Waves 0-3 (consumers): 64x32 tile each, v_mfma_f32_16x16x32_bf16 with A = w^T (ds_read_b64_tr_b16) and
; The last k-steps run accumulator-major so that BN + SiLU + stores overlap the remaining MFMAs.""")
    A('.amdgcn_target "amdgcn-amd-amdhsa--gfx950"')
    A(f".text\n.globl {KN}\n.p2align 12\n.p2align 8\n.type {KN},@function\n{KN}:")
    A("s_load_dwordx16 s[80:95], s[0:1], 0")
    A("s_cmp_ge_u32 s2, 256\ns_cbranch_scc1 L_end")
    tm='s_memrealtime' if rt else 's_memtime'
    if stamps: A("s_memtime s[60:61]\ns_memrealtime s[62:63]\ns_load_dwordx2 s[96:97], s[0:1], 64")
    A("v_lshrrev_b32 v1, 6, v0\nv_and_b32 v0, 63, v0")
    if isinstance(xmap,(list,tuple)):
        assert sorted(xmap)==list(range(8))
        A(f"s_and_b32 s3, s2, 7\ns_lshl_b32 s3, s3, 2\ns_lshr_b32 s3, {sum(v<<(4*i) for i,v in enumerate(xmap)):#x}, s3")
        A("s_and_b32 s20, s3, 1\ns_bfe_u32 s3, s3, 0x20001\ns_lshr_b32 s21, s2, 3")
    else: A("s_and_b32 s20, s2, 1\ns_bfe_u32 s3, s2, 0x20001\ns_lshr_b32 s21, s2, 3")
    A("v_readfirstlane_b32 s25, v1")
    common_at=len(A.L)
    if xmap==3: A("s_xor_b32 s3, s3, 1")
    A("s_and_b32 s23, s21, 7\ns_lshl3_add_u32 s26, s20, s23\ns_lshl_b32 s22, s26, 7")
    A("s_lshr_b32 s23, s21, 3\ns_lshl2_add_u32 s27, s3, s23\ns_lshl_b32 s24, s27, 7")
    A(f"s_and_b32 s4, s26, {kswap}")
    if kswap>1: A("s_bcnt1_i32_b32 s4, s4\ns_and_b32 s4, s4, 1")
    if lay2:
        common=A.L[common_at:]
        pf=[]
        if codepf:
            pf=["s_cmp_eq_u32 s25, 3","s_cbranch_scc0 L_ncp","s_getpc_b64 s[8:9]","L_pc:",f"s_sub_u32 s8, s8, L_pc-{KN}","s_subb_u32 s9, s9, 0","s_lshl_b32 s10, s21, 9",
                "v_lshl_add_u32 v1, v0, 7, s10",f"v_min_u32 v1, L_end-{KN}, v1","s_mov_b64 exec, 15","global_load_dword v1, v1, s[8:9]","s_mov_b64 exec, -1","L_ncp:"]
            pf=[l if l.endswith(':') else '    '+l for l in pf]
        A.L[common_at:common_at]=["    s_mov_b32 s6, 1"]+pf+["    TOUCH2_HERE","    s_cmp_lt_u32 s25, 4","    s_cbranch_scc1 L_cons"]
    else: A("s_cmp_lt_u32 s25, 4\ns_cbranch_scc1 L_cons")
    nls=[0]
    def lst():
        if lstamp: A(f"{tm} s[{64+2*nls[0]}:{65+2*nls[0]}]"); nls[0]+=1
    if prio_l: A(f"s_setprio {prio_l}")
    A("s_and_b32 s23, s25, 3")
    A("v_lshrrev_b32 v3, 3, v0\nv_and_b32 v4, 7, v0\nv_lshrrev_b32 v5, 4, v0")
    A("s_lshl_b32 s28, s23, 5\ns_add_u32 s28, s28, s22")
    A("v_lshl_add_u32 v6, v3, 2, s28\nv_lshlrev_b32 v6, 11, v6")
    A("s_and_b32 s38, s23, 1\ns_lshl_b32 s38, s38, 2")
    A("v_add_u32 v7, s38, v5\nv_xor_b32 v7, v7, v4\nv_lshl_add_u32 v10, v7, 4, v6")
    pack=lambda T,o: sum(T[o+i]<<(4*i) for i in range(8))
    sg=list(range(16))
    if swap: sg[swap[0]],sg[swap[1]]=swap[1],swap[0]; assert min(swap)>0
    tables=[[sg[p] for p in T] for T in tables]
    for T in tables: assert sorted(T)==list(range(16))
    assert tables[0][0]==0
    A("s_add_u32 s39, s26, s27\ns_and_b32 s39, s39, 15")
    if slowpf and len(tables)==16: A("s_and_b32 s37, s27, 7\ns_cmp_eq_u32 s37, 3\ns_cselect_b32 s39, 16, s39")
    if slowpf and len(tables)==20:
        assert all(tables[16+q][0]==0 for q in range(4))
        A("s_and_b32 s37, s27, 7\ns_and_b32 s5, s39, 3\ns_add_u32 s5, s5, 16\ns_cmp_eq_u32 s37, 3\ns_cselect_b32 s39, s5, s39")
    firsts=[T[0] for T in tables]
    A(f"s_min_u32 s48, s39, 16\ns_lshl_b32 s48, s48, 2\ns_mov_b32 s40, {pack(firsts,0):#x}\ns_mov_b32 s41, {pack(firsts,8):#x}\ns_lshr_b64 s[40:41], s[40:41], s48")
    A("s_and_b32 s32, s40, 15\ns_lshl_b32 s33, s32, 17\ns_lshl_b32 s32, s32, 7")
    A(f"s_lshl_b32 s29, s23, 10\ns_mov_b32 m0, s29\ns_mov_b32 s10, 0x400000\ns_mov_b32 s11, 0x20000")
    A(f"v_add_u32 v13, {3*2048}, v10")
    A("s_lshl_b32 s28, s23, 3\ns_lshl_b32 s30, s4, 5\ns_add_u32 s28, s28, s30")
    A("v_add_u32 v6, s28, v3\nv_lshlrev_b32 v6, 11, v6\nv_add_u32 v6, s24, v6\nv_and_b32 v7, 1, v5\nv_lshlrev_b32 v7, 1, v7\nv_xor_b32 v7, s38, v7\nv_xor_b32 v7, v7, v4\nv_lshl_add_u32 v16, v7, 4, v6")
    A("v_cmp_gt_u32 vcc, 8, v0\ns_mov_b32 s30, 4096")
    A("s_add_u32 s28, s22, 128\ns_lshl_b32 s28, s28, 11\ns_sub_u32 s37, s22, 1\ns_lshl_b32 s37, s37, 11\ns_cmp_eq_u32 s22, 0\ns_cselect_b32 s37, 0x80000000, s37")
    A(f"v_lshl_add_u32 v8, v4, 4, s28\nv_xor_b32 v7, 7, v4\nv_lshl_add_u32 v9, v7, 4, s37\nv_cndmask_b32 v14, v9, v8, vcc")
    A(f"s_add_u32 s28, s29, {WB}\ns_mov_b32 s14, 0x600000\ns_mov_b32 s15, 0x20000")
    lst()
    A("s_waitcnt lgkmcnt(0)")
    lst()
    A("s_mov_b32 s8, s80\ns_and_b32 s9, s81, 0xffff")
    uid=[0]; issued=[]
    def ld_x(name,fill,first=False,hook=None):
        for i,cls in enumerate((0,3,1,2)):
            if hook: hook(i)
            if not (first and i==0):
                A(f"s_add_u32 m0, s29, {XCLS[cls]*128}"); A(fill.pop(0) if fill else "s_nop 0")
            A(f"buffer_load_dwordx4 v{10+cls}, s[8:11], s32 offen lds"); issued.append((name,0))
        uid[0]+=1
        A(f"s_cmp_lg_u32 s23, 0\ns_cbranch_scc1 L_nh{uid[0]}")
        A(f"s_mov_b32 m0, s30\ns_mov_b64 exec, 0xffff")
        A(f"buffer_load_dwordx4 v14, s[8:11], s32 offen lds\ns_mov_b64 exec, -1\nL_nh{uid[0]}:"); issued.append((name,1))
    def ld_w(name,ks,fill,hook=None):
        if 'd' in fake and name=='W1':
            for o in fill: A(o)
            return
        for t in range(3):
            if hook: hook(t)
            A(f"s_add_u32 m0, s28, {t*8192+ks*4096}"); A(fill.pop(0) if fill else "s_nop 0")
            A(f"buffer_load_dwordx4 v{16+ks*3+t}, s[12:15], s33 offen lds"); issued.append((name,0))
        if hook: hook(3)
    def wait_for(name):
        k=max(i for i,(p,h) in enumerate(issued) if p==name)
        n=sum(1 for p,h in issued[k+1:] if not h); nh=sum(1 for p,h in issued[k+1:] if h)
        if nh:
            uid[0]+=1
            A(f"s_waitcnt vmcnt({n+nh})\ns_cmp_eq_u32 s23, 0\ns_cbranch_scc1 L_wh{uid[0]}\ns_waitcnt vmcnt({n})\nL_wh{uid[0]}:")
        else: A(f"s_waitcnt vmcnt({n})")
    def slow_loads(st_reg):
        for t in range(3): A(f"s_load_dword s31, s[{50+2*t}:{51+2*t}], {st_reg}")
    A("; ---- slot 0")
    ld_x('X0',[f"v_add_u32 v11, {2048}, v10", f"v_add_u32 v12, {2*2048}, v10","s_mov_b32 s12, s82"],first=True)
    ld_w('W00',0,["s_and_b32 s13, s83, 0xffff",f"v_add_u32 v17, {1024*2048}, v16",f"v_add_u32 v18, {2048*2048}, v16"])
    ld_w('W01',1,[f"v_xor_b32 v{19+t}, {32*2048}, v{16+t}" for t in range(3)])
    lst()
    A("s_cmp_eq_u32 s23, 1\ns_cselect_b64 s[16:17], s[86:87], s[84:85]\ns_cmp_eq_u32 s23, 2\ns_cselect_b64 s[16:17], s[88:89], s[16:17]\ns_cmp_eq_u32 s23, 3\ns_cselect_b64 s[16:17], s[90:91], s[16:17]")
    A(f"s_and_b32 s17, s17, 0xffff\ns_mov_b32 s18, 2048\ns_mov_b32 s19, 0x20000\nv_lshlrev_b32 v6, 4, v0\ns_lshl_b32 s37, s23, 7\ns_add_u32 m0, s37, {PB}\ns_mov_b64 exec, 0xff")
    A("buffer_load_dwordx4 v6, s[16:19], s24 offen lds\ns_mov_b64 exec, -1"); issued.append(('P',0))
    if slowpf:
        A("; scalar-load prefetch into L2 of the lines that no workgroup fetches early (w columns 192..255 mod 512, and their x rows)")
        A("s_lshl2_add_u32 s38, s21, s23\ns_bitcmp1_b32 s3, 0\ns_cbranch_scc1 L_odd0")
        A("s_lshr_b32 s37, s38, 1\ns_lshl_b32 s37, s37, 11\ns_and_b32 s38, s38, 1\ns_lshl_b32 s38, s38, 6\ns_add_u32 s37, s37, s38")
        A(f"s_lshl_b32 s38, s3, 9\ns_add_u32 s37, s37, s38\ns_add_u32 s37, s37, 384")
        A("s_add_u32 s50, s82, s37\ns_addc_u32 s51, s83, 0\ns_add_u32 s52, s50, 0x200000\ns_addc_u32 s53, s51, 0\ns_add_u32 s54, s50, 0x400000\ns_addc_u32 s55, s51, 0")
        for st in range(1,slowpf+2):
            A(f"s_mov_b32 s34, {sg[st]*64*2048}"); slow_loads('s34')
        A(f"s_mov_b32 s35, {slowpf+1}\ns_branch L_pf0\nL_odd0:")
        A("s_lshl_b32 s37, s38, 11\ns_lshl_b32 s38, s20, 6\ns_add_u32 s37, s37, s38\ns_add_u32 s50, s80, s37\ns_addc_u32 s51, s81, 0")
        A("s_mov_b64 s[52:53], s[50:51]\ns_mov_b64 s[54:55], s[50:51]\ns_lshr_b32 s49, s3, 1\ns_lshl_b32 s49, s49, 3\ns_add_u32 s49, s49, 13")
        for st in range(1,slowpf+2+xex):
            A(f"s_add_u32 s34, s49, {st}\ns_and_b32 s34, s34, 15\ns_lshl_b32 s34, s34, 18\ns_load_dword s31, s[50:51], s34 offset:{sg[st]*128}")
        A(f"s_mov_b32 s35, {slowpf+1+xex}\nL_pf0:")
    if tailpf:
        A("s_lshl2_add_u32 s38, s26, s23\ns_lshr_b32 s37, s38, 1\ns_lshl_b32 s37, s37, 11\ns_and_b32 s38, s38, 1\ns_lshl_b32 s38, s38, 6\ns_add_u32 s37, s37, s38\ns_add_u32 s37, s37, s24")
        A("s_add_u32 s74, s82, s37\ns_addc_u32 s75, s83, 0\ns_add_u32 s76, s74, 0x200000\ns_addc_u32 s77, s75, 0\ns_add_u32 s78, s74, 0x400000\ns_addc_u32 s79, s75, 0")
        A(f"s_and_b32 s37, s27, 7\ns_cmp_eq_u32 s37, 3\ns_cselect_b32 s43, 16, {taild}")
    def tail_step():
        if not tailpf: return
        uid[0]+=1; u=uid[0]
        A(f"s_add_u32 s43, s43, 1\ns_cmp_ge_u32 s43, 16\ns_cbranch_scc1 L_not{u}\ns_add_u32 s34, s43, s27\ns_andn2_b32 s34, 1, s34\ns_lshl1_add_u32 s34, s43, s34\ns_lshl_b32 s34, s34, 16")
        for t in range(3-tailpf,3): A(f"s_load_dword s31, s[{74+2*t}:{75+2*t}], s34")
        A(f"L_not{u}:")
    ilo,ihi=pack(sg,0),pack(sg,8)
    A(f"s_mov_b32 s40, {ilo:#x}\ns_mov_b32 s41, {ihi:#x}")
    for r in range(len(tables)):
        lo,hi=pack(tables[r],0),pack(tables[r],8)
        if lo==ilo and hi==ihi: continue
        A(f"s_cmp_eq_u32 s39, {r}")
        if lo!=ilo: A(f"s_cselect_b32 s40, {lo:#x}, s40")
        if hi!=ihi: A(f"s_cselect_b32 s41, {hi:#x}, s41")
    def nxt(d):
        A("s_lshr_b64 s[40:41], s[40:41], 4\ns_and_b32 s32, s40, 15\ns_lshl_b32 s33, s32, 17\ns_lshl_b32 s32, s32, 7")
        A(f"s_add_u32 s29, s29, {d*XS}\ns_add_u32 s30, s30, {d*XS}\ns_add_u32 s28, s28, {d*WS}")
    def pf_step():
        if not slowpf: return
        uid[0]+=1; u=uid[0]
        A(f"s_add_u32 s35, s35, 1\ns_cmp_ge_u32 s35, 16\ns_cbranch_scc1 L_nosl{u}")
        st='s35'
        if swap:
            st='s46'; A(f"s_cmp_eq_u32 s35, {swap[0]}\ns_cselect_b32 s46, {swap[1]}, s35\ns_cmp_eq_u32 s35, {swap[1]}\ns_cselect_b32 s46, {swap[0]}, s46")
        A(f"s_bitcmp1_b32 s3, 0\ns_cbranch_scc1 L_odd{u}\ns_lshl_b32 s34, {st}, 17")
        slow_loads('s34'); A(f"s_branch L_nosl{u}\nL_odd{u}:")
        A(f"s_add_u32 s34, s49, s35\ns_and_b32 s34, s34, 15\ns_lshl_b32 s34, s34, 11\ns_add_u32 s34, s34, {st}\ns_lshl_b32 s34, s34, 7\ns_load_dword s31, s[50:51], s34")
        A(f"L_nosl{u}:")
    if J is not None:
        assert len(J)==2*E
        nxt(1)
        if tap0:
            k0=[i for i,(p,h) in enumerate(issued) if p=='W00'][0]; issued[k0]=('T0',0)
            if not tapj: wait_for('T0'); A("s_barrier")
        for e in range(1,E+1):
            def mk(need,at):
                def h(t):
                    if t==at: wait_for(need); lst() if e==1 else None; A("s_barrier")
                return h
            ld_x(f'X{e}',[],hook=(mk('T0',tapj) if (e==1 and tap0 and tapj) else None))
            ld_w(f'W{e}0',0,[],mk(f'W{e-1}0',J[2*e-2]))
            ld_w(f'W{e}1',1,[],mk('P' if (e==1 and parhead) else f'W{e-1}1',J[2*e-1]))
            if e>=2: pf_step()
            if e==wex: pf_step()
            nxt(-2 if e%3==2 else 1); p0=e+1
    else:
        nxt(1)
        ld_x('X1',[])
        if E>=1: wait_for('W00'); lst(); A("s_barrier")
        ld_w('W10',0,[])
        if E>=1 or b0mode==2: wait_for('P' if parhead else 'W01'); lst(); A("s_barrier")
        ld_w('W11',1,[])
        if E==0 and b0mode==0: wait_for('P' if parhead else 'W01'); lst(); A("s_barrier")
        tail_step()
        nxt(1); p0=2
        for e in range(2,E+1):
            ld_x(f'X{e}',[]); wait_for(f'W{e-1}0'); A("s_barrier")
            ld_w(f'W{e}0',0,[]); wait_for(f'W{e-1}1'); A("s_barrier")
            ld_w(f'W{e}1',1,[]); pf_step()
            nxt(-2 if e%3==2 else 1); p0=e+1
    A(f"s_mov_b32 s42, {p0}\ns_mov_b32 s36, {p0%3}\ns_mov_b32 m0, s29\ns_branch L_ld1")
    A("L_ld:\ns_barrier\nL_ld1:")
    issued.append(('prev',0))
    ld_x('X',["s_lshr_b64 s[40:41], s[40:41], 4","s_and_b32 s44, s40, 15","s_add_u32 s36, s36, 1"],first=True)
    A(f"s_cmp_eq_u32 s36, 3\ns_cselect_b32 s45, -2, 1\ns_cselect_b32 s36, 0, s36")
    ld_w('W0',0,[f"s_mul_i32 s38, s45, {XS}","s_lshl_b32 s32, s44, 7","s_add_u32 s29, s29, s38"])
    ld_w('W1',1,["s_add_u32 s30, s30, s38",f"s_mul_i32 s37, s45, {WS}","s_add_u32 s42, s42, 1"])
    A("s_add_u32 s28, s28, s37\ns_lshl_b32 s33, s44, 17\ns_mov_b32 m0, s29")
    pf_step(); tail_step()
    wait_for('prev')
    A("s_cmp_lt_u32 s42, 16\ns_cbranch_scc1 L_ld")
    A("s_barrier")
    xv=0
    if codepf>=2:
        A(f"s_getpc_b64 s[44:45]\nL_pc2:\ns_add_u32 s44, s44, L_fin-3072-L_pc2\ns_addc_u32 s45, s45, 0\ns_mul_i32 s37, s23, 768\nv_lshl_add_u32 v6, v0, 7, s37\ns_mov_b64 exec, 63\nglobal_load_dword v6, v6, s[44:45]"); xv=1
    if split15: A(f"s_waitcnt vmcnt({3+xv})\ns_barrier")
    A(f"s_waitcnt vmcnt({xv})")
    lst()
    A("s_barrier")
    if lstamp:
        A(f"s_waitcnt lgkmcnt(0)\ns_cmp_eq_u32 s25, {lwave}\ns_cbranch_scc0 L_end")
        A("s_mov_b32 s48, s96\ns_and_b32 s49, s97, 0xffff\ns_mov_b32 s50, 0x100000\ns_mov_b32 s51, 0x20000\ns_lshl_b32 s26, s2, 7\nv_mov_b32 v12, s26\ns_mov_b64 exec, 1")
        for i in range(nls[0]):
            A(f"s_sub_u32 s56, s{64+2*i}, s{62 if rt else 60}\nv_mov_b32 v13, s56\nbuffer_store_dword v13, v12, s[48:51], 0 offen offset:{100+4*i}\ns_nop 1")
    A("s_endpgm")
    if lay2: A(".p2align 12")
    A("L_cons:")
    if lay2: A("s_mov_b32 s6, 0"); A.L+=common
    if prio_c: A(f"s_setprio {prio_c}")
    A("v_and_b32 v14, 15, v0\nv_lshrrev_b32 v15, 4, v0")
    A("v_add_u32 v16, 4, v14\nv_bfe_u32 v16, v16, 3, 1\nv_and_b32 v17, 7, v14\nv_lshl_add_u32 v16, v17, 1, v16")
    A("s_lshr_b32 s29, s25, 1\ns_and_b32 s27, s25, 1")
    A("s_lshl_b32 s28, s29, 4\nv_add_u32 v16, s28, v16")
    A("s_lshl_b32 s28, s4, 2\nv_xor_b32 v21, s28, v15")
    for sh in range(3):
        A(f"v_add_u32 v17, {sh-1}, v16\nv_bfe_u32 v18, v17, 1, 3\nv_xor_b32 v18, v18, v21\nv_lshlrev_b32 v18, 4, v18\nv_lshl_add_u32 v{2+2*sh}, v17, 7, v18")
        if sh==0: A(f"v_add_u32 v2, {34*128}, v2")
        A(f"v_xor_b32 v{3+2*sh}, 64, v{2+2*sh}")
    A("v_bfe_u32 v17, v0, 2, 2\nv_lshl_add_u32 v18, v15, 3, v17\nv_lshlrev_b32 v18, 7, v18")
    A("v_and_b32 v19, 3, v0\nv_lshl_add_u32 v18, v19, 3, v18")
    A(f"v_and_b32 v20, 1, v17\nv_lshl_add_u32 v20, v20, 2, v15\nv_lshl_add_u32 v20, v20, 2, v19\ns_lshl_b32 s28, s27, 6\ns_add_u32 s28, s28, {PB}\nv_lshl_add_u32 v13, v20, 1, s28")
    A("v_lshrrev_b32 v17, 1, v17\nv_and_b32 v19, 1, v15\nv_lshl_or_b32 v17, v19, 1, v17")
    A("s_lshl_b32 s28, s27, 1\nv_xor_b32 v17, s28, v17\nv_lshl_add_u32 v8, v17, 5, v18")
    A(f"v_add_u32 v8, {WB}, v8\nv_xor_b32 v9, 32, v8\nv_add_u32 v10, {2*WS}, v8\nv_add_u32 v11, {2*WS}, v9")
    A("v_lshlrev_b32 v17, 2, v16\nv_add_u32 v17, s22, v17\nv_lshlrev_b32 v17, 11, v17")
    A("v_and_b32 v18, 1, v15\nv_lshlrev_b32 v18, 5, v18\nv_lshrrev_b32 v19, 1, v15\nv_lshl_add_u32 v18, v19, 4, v18")
    A("s_lshl_b32 s28, s27, 6\ns_add_u32 s28, s28, s24\nv_add3_u32 v12, v17, v18, s28")
    A("s_mov_b32 s18, 0x400000\ns_mov_b32 s19, 0x20000\ns_mov_b32 s58, 4096\ns_mov_b32 s59, 0xbfb8aa3b")
    A("s_waitcnt lgkmcnt(0)")
    A("s_mov_b32 s16, s92\ns_and_b32 s17, s93, 0xffff")
    if coal:
        A("v_and_b32 v14, 12, v0\nv_bfe_u32 v17, v0, 4, 1\nv_lshl_or_b32 v14, v17, 1, v14\nv_lshrrev_b32 v17, 5, v0\nv_or_b32 v14, v14, v17")
        A("v_add_u32 v16, 4, v14\nv_bfe_u32 v16, v16, 3, 1\nv_and_b32 v17, 7, v14\nv_lshl_add_u32 v16, v17, 1, v16\ns_lshl_b32 s5, s29, 6\ns_add_u32 s5, s5, s22")
        A("v_lshl_add_u32 v16, v16, 2, s5\nv_lshlrev_b32 v16, 11, v16\nv_and_b32 v17, 1, v0\nv_lshlrev_b32 v17, 5, v17\nv_and_b32 v18, 2, v0\nv_lshl_add_u32 v17, v18, 3, v17\nv_add3_u32 v14, v16, v17, s28")
        A("s_mov_b32 s8, 0x55555555\ns_mov_b32 s9, s8\ns_mov_b32 s10, 0x33333333\ns_mov_b32 s11, s10")
    if 'x' in fake: A("v_lshlrev_b32 v15, 4, v15\nv_bfe_u32 v14, v0, 3, 1\nv_lshl_add_u32 v15, v14, 7, v15")
    A("TOUCH_HERE")
    if not lay2: A("s_branch L_main\n.p2align 12")
    if dbgwarm:
        nw,gap=dbgwarm
        A("s_mov_b32 s12, 0x9e3779b1\nv_add_u32 v72, 77, v0")
        for r in range(73,104): A(f"v_mul_lo_u32 v{r}, v{r-1}, s12")
        for r in range(72,104): A(f"v_and_b32 v{r}, 0xbdffbdff, v{r}\nv_or_b32 v{r}, 0x38003800, v{r}")
        A(f"s_mov_b32 s13, {nw}\nL_warm:")
        for q in range(8):
            A(f"v_mfma_f32_16x16x32_bf16 v[{16+4*q}:{19+4*q}], v[{72+4*q}:{75+4*q}], v[{72+4*((q*3+1)%8)}:{75+4*((q*3+1)%8)}], 0")
            if gap: A(f"s_nop {gap}")
        A("s_sub_u32 s13, s13, 1\ns_cmp_lg_u32 s13, 0\ns_cbranch_scc1 L_warm")
    A("L_main:")
    ACC=lambda f,g: 16+(f*2+g)*4
    SC=48; SH=56; T=64; P=68; F0=72; NSLOT=nslot
    M=[]; prev=None
    for (n,f,g) in triples(Q,tail,c6):
        best=None
        for ts in ((0,1,2),(2,1,0)):
            w=('W',n,ts[0],g); x=('X',n,f+ts[0])
            sc=(prev is not None and (w==prev[0] or x==prev[1]))
            if best is None or sc>best[0]: best=(sc,ts)
        for t in best[1]:
            M.append(((f,g),('W',n,t,g),('X',n,f+t))); prev=(M[-1][1],M[-1][2])
    if tap0: M[:24]=[m for m in M[:24] if m[1][2]==0]+[m for m in M[:24] if m[1][2]!=0]
    NM=len(M); assert NM==768 and len(set(M))==768
    first={}; last={}; acc_last={}
    for i,(a,w,x) in enumerate(M):
        for fr in (w,x): first.setdefault(fr,i); last[fr]=i
        acc_last[a]=i
    def grp(fr):
        n=fr[1]; st=n>>1
        if tap0 and n==0 and fr[0]=='W' and fr[2]>0: return (0,2)
        return (st,1) if ((st<E or (split15 and st==15)) and fr[0]!='X' and n&1) else (st,0)
    R=[]
    for fr in sorted(first,key=lambda q:first[q]):
        if fr[0]=='X': R.append([fr,0,4,first[fr]])
        else: R+= [[fr,0,2,first[fr]],[fr,1,2,first[fr]]]
    PAR_AT=30 if parhead else 48*3+20; PN=1 if parhead else 6
    for k in range(4): R.append([('P',PN,k),0,2,PAR_AT])
    R.sort(key=lambda r:(min(r[0][1]>>1,13),r[3]))
    pos=[0]*len(R); cur=NM; cnt=0; cost=0
    for k in range(len(R)-1,-1,-1):
        fr,h,c,dl=R[k]
        lim=dl-(LEADM if (LEADM and (lm_from if lm_from is not None else E)<=(fr[1]>>1)<14) else LEAD)
        if k+1<len(R):
            s0,s1=fr[1]>>1,R[k+1][0][1]>>1
            if s0<s1 and s1<=13: lim=min(lim,pos[k+1]-GAPB)
        if lim<cur: cur=lim; cnt=0; cost=0
        cap=cap_tail if cur>=tail_from*24 else (cap_head if cur<head_to else cap_main)
        if cnt+1>cap[0] or cost+c>cap[1]: cur-=1; cnt=0; cost=0
        pos[k]=cur; cnt+=1; cost+=c
    for k in range(len(R)):
        if R[k][0][1]>=1: pos[k]=max(pos[k],0)
        if tap0 and (grp(R[k][0])==(0,2) or (k and pos[k-1]>=0)): pos[k]=max(pos[k],tap0)
    def rnd(v): return [[f"v_cvt_pk_bf16_f32 {v}, {v}, {v}"],[f"v_lshlrev_b32 {v}, 16, {v}"]] if round_scale else []
    m_,v_,g_,b_=[f"v{T+k}" for k in range(4)]
    par=[[f"v_lshlrev_b32 v{T+k}, 16, v{T+k}"] for k in range(4)]
    par+=[[f"v_add_f32 {v_}, 0x3727c5ac, {v_}"]]+rnd(v_)+[[f"v_sqrt_f32 {v_}, {v_}"]]+rnd(v_)+[[f"v_rcp_f32 {v_}, {v_}"]]+rnd(v_)+[[f"v_mul_f32 {v_}, {g_}, {v_}"]]+rnd(v_)
    par+=[[f"v_fma_f32 {b_}, -{m_}, {v_}, {b_}"],[f"v_mul_f32 {v_}, s59, {v_}"],[f"v_mul_f32 {b_}, s59, {b_}"],[],[]]
    for k in range(8): par+=[[f"v_mov_b32_dpp v{SC+k}, {v_} row_newbcast:{k} row_mask:0xf bank_mask:0xf"],[f"v_mov_b32_dpp v{SH+k}, {b_} row_newbcast:{k} row_mask:0xf bank_mask:0xf"]]
    done_g={}
    def epi(f,g):
        a=ACC(f,g); X=[]
        pr=lambda r,k: f"v[{r+k}:{r+k+1}]"
        for k in (0,2): X.append(([f"v_fma_f32 v{a+j}, v{a+j}, v{SC+4*g+j}, v{SH+4*g+j}" for j in (k,k+1)], f"v_pk_fma_f32 {pr(a,k)}, {pr(a,k)}, {pr(SC+4*g,k)}, {pr(SH+4*g,k)}"))
        for k in range(4): X.append(([f"v_exp_f32 v{T+k}, v{a+k}"],None))
        for k in (0,2): X.append(([f"v_fma_f32 v{T+j}, v{T+j}, s59, s59" for j in (k,k+1)], f"v_pk_fma_f32 {pr(T,k)}, {pr(T,k)}, s[58:59], s[58:59] op_sel:[0,1,1] op_sel_hi:[1,1,1]"))
        for k in range(4): X.append(([f"v_rcp_f32 v{T+k}, v{T+k}"],None))
        for k in (0,2): X.append(([f"v_mul_f32 v{a+j}, v{a+j}, v{T+j}" for j in (k,k+1)], f"v_pk_mul_f32 {pr(a,k)}, {pr(a,k)}, {pr(T,k)}"))
        X.append(([f"v_cvt_pk_bf16_f32 v{P+2*g+j}, v{a+2*j}, v{a+2*j+1}" for j in (0,1)],None))
        done_g.setdefault(f,set()).add(g)
        if len(done_g[f])==2:
            co=f>=4-coal
            if co and 'c' not in fake:
                dp=lambda d,s0,s1,q: f"v_cndmask_b32_dpp v{d}, v{s0}, v{s1}, vcc quad_perm:{q} row_mask:0xf bank_mask:0xf"
                X.append((["POST","s_mov_b64 vcc, s[8:9]","s_nop 0",dp(T,P+2,P,'[1,0,3,2]'),dp(T+1,P+3,P+1,'[1,0,3,2]'),"s_not_b64 vcc, vcc",dp(P+2,P,P+2,'[1,0,3,2]'),dp(P+3,P+1,P+3,'[1,0,3,2]'),
                     "s_mov_b64 vcc, s[10:11]",f"v_permlane32_swap_b32 v{T}, v{P+2}",f"v_permlane32_swap_b32 v{T+1}, v{P+3}","s_nop 0",
                     dp(P,P+2,T,'[2,3,0,1]'),dp(P+1,P+3,T+1,'[2,3,0,1]'),"s_not_b64 vcc, vcc",dp(P+2,T,P+2,'[2,3,0,1]'),dp(P+3,T+1,P+3,'[2,3,0,1]')],None))
            X.append((["s_nop 0" if co else "s_nop 1",f"v_permlane16_swap_b32 v{P}, v{P+2}",f"v_permlane16_swap_b32 v{P+1}, v{P+3}",
                   f"buffer_store_dwordx4 v[{P}:{P+3}], v{14 if co else 12}, s[16:19], {'s58' if f>=2 else '0'} offen offset:{(f&1)*2048} {store_flags if isinstance(store_flags,str) else store_flags[f]}"],None))
        return X
    EP=[(a,e) for a in sorted(acc_last,key=lambda a:acc_last[a]) for e in epi(*a)]
    STR=list(range(32,58,2))+list(range(64,80,2)); nst=[0]
    def stamp(force=False):
        if stamps and (force or not lite): A(f"{tm} s[{STR[nst[0]]}:{STR[nst[0]]+1}]"); nst[0]+=1
    free=list(range(NSLOT)); slot={}; peak=[0]
    barline={}; nread=[0]; ridx={}; covered=[0]; bars=set(); rpos=[]; ninstr=lambda: len(A.L); acc_done_at={}
    def reg(fr): return F0+4*slot[fr]
    def wait_upto(k,now):
        if k<=covered[0]: return
        kk=k
        while kk<nread[0] and rpos[kk]<=now-LEAD: kk+=1
        kk=max(kk,nread[0]-14)
        A(f"s_waitcnt lgkmcnt({nread[0]-kk})"); covered[0]=kk
    def do_bar(b,now):
        if b[1]==0 and 1<=b[0]<=13 and covered[0]<nread[0]: A("s_waitcnt lgkmcnt(0)"); covered[0]=nread[0]
        if parhead and b==parbar:
            for o in par:
                if not o: continue
                if 'dpp' in o[0] and 'dpp' not in A.L[-1] : A("s_nop 1")
                A(o[0])
                if o[0].startswith(('v_sqrt','v_rcp')): A("s_nop 0")
        if b in dbgpause: A(f"s_sleep {dbgpause[b]}")
        if pre and b[0]<=2: stamp(True)
        A("s_barrier"); bars.add(b); barline[b]=len(A.L)-1
        if pre and (b==(0,1) or (lite and b in ((1,0),(2,0)))): stamp(True)
        if b[1]==0: stamp(force=b[0] in (0,14))
        if verbose: print("barrier",b,"after mfma",now)
    def do_read(k,now):
        fr,h,c,dl=R[k]; b=grp(fr)
        if b not in bars: do_bar(b,now)
        n=fr[1]; st=n>>1; ks=n&1; sl=st%NS
        if fr[0]=='P': A(f"ds_read_u16 v{T+fr[2]}, v13 offset:{128*fr[2]}")
        else:
            if h==0:
                assert free, ("out of fragment registers", now)
                pref=((n&1) if (c6 is None and not (LEADM and LEADM>14)) else (n%3))*12+(fr[2] if fr[0]=='X' else 6+fr[2]*2+fr[3])
                slot[fr]=free.pop(free.index(pref) if (lifo and pref in free) else 0); peak[0]=max(peak[0],NSLOT-len(free))
            r=reg(fr)
            if 'x' in fake and 3<=n<29 and fr[0]=='X' and fr[2]==5:
                ridx[fr]=-1; return
            if 'x' in fake and 3<=n<29 and fr[0]=='X' and fr[2]==0:
                A(f"ds_read_b128 v[68:71], v15 offset:{sl*XS}"); ridx[fr]=nread[0]; nread[0]+=1; rpos.append(now); return
            if 'r' in fake and 3<=n<29 and ((fr[0]=='W' and n&1) or (fr[0]=='X' and fr[2]==5)):
                ridx[fr]=-1; return
            if fr[0]=='X':
                j=fr[2]; sh=0 if j==0 else (2 if j==5 else 1)
                A(f"ds_read_b128 v[{r}:{r+3}], v{2+2*sh+ks} offset:{sl*XS+(0 if j in (0,1,5) else XCLS[j-1]*128)}")
            else:
                t,g=fr[2],fr[3]
                A(f"ds_read_b64_tr_b16 v[{r+2*h}:{r+2*h+1}], v{8+g+2*(sl//2)} offset:{(sl%2)*WS+t*8192+ks*4096+h*512}")
        ridx[fr]=nread[0]; nread[0]+=1; rpos.append(now)
    k=0; started=set()
    PQ=[] if parhead else [(o[0] if o else None) for o in par]
    EQ=[]
    for gi,(ea,e) in enumerate(EP):
        for o in e[0]: EQ.append((ea,o,gi))
    pi=0; ei=0; last_cvt=[-9]; fk=[0]
    slots=lambda o: 2 if o.startswith(('v_exp','v_rcp','v_sqrt','buffer_')) else 1
    def need(i): return max(ridx[M[i][1]],ridx[M[i][2]])+1
    while k<len(R) and pos[k]<0: do_read(k,-1); k+=1
    wait_upto(need(0),0)
    for i,(a,w,x) in enumerate(M):
        assert need(i)<=covered[0]
        ar=ACC(*a); c=f"v[{ar}:{ar+3}]" if a in started else "0"; started.add(a)
        A(f"v_mfma_f32_16x16x32_bf16 v[{ar}:{ar+3}], v[{reg(w)}:{reg(w)+3}], v[{reg(x)}:{reg(x)+3}], {c}")
        if acc_last[a]==i: acc_done_at[a]=ninstr()
        if i>=2:
            for fr in M[i-2][1:]:
                if last[fr]==i-2: free.append(slot[fr])
        n0=ninstr(); nr=0
        while k<len(R) and pos[k]<=i: do_read(k,i); k+=1; nr+=1
        if barsep and nr==0 and k<len(R) and pos[k]==i+1:
            b=grp(R[k][0])
            if b not in bars and b[1]==0 and 1<=b[0]<=13:
                if barsep==1:
                    if covered[0]<nread[0]: A("s_waitcnt lgkmcnt(0)"); covered[0]=nread[0]
                else: do_bar(b,i)
        if i+1<NM: wait_upto(need(i+1),i+1)
        if i==PAR_AT and not parhead: wait_upto(ridx[('P',PN,3)]+1,i)
        used=(ninstr()-n0)+nr
        if i==NM-1: break
        if used==0 and ei<len(EQ) and EQ[ei][1].startswith('buffer_'):
            A(EQ[ei][1]); ei+=1; used=2
        room=3-max(used,1)+(1 if (overfill and i%overfill==0) else 0)
        if 'v' in fake and 72<=i<29*24:
            if i%24==0: fk[0]=8
            while fk[0]>0 and room>0:
                fk[0]-=1; room-=1; q=fk[0]&3
                if fk[0]>=4: A(f"v_cndmask_b32_dpp v{64+q}, v{reg(x)+q}, v{reg(w)+q}, vcc row_shr:1 row_mask:0xf bank_mask:0xf bound_ctrl:1")
                else: A(f"v_mov_b32_dpp v{64+q}, v{reg(w)+q} row_shl:1 row_mask:0xf bank_mask:0xf")
        if i>=PAR_AT and pi<len(PQ):
            o=PQ[pi]
            if o is None: pi+=1
            elif slots(o)<=room: A(o); pi+=1
        while ei<len(EQ) and room>0:
            ea,o,gi=EQ[ei]
            if ea not in acc_done_at or ninstr()-acc_done_at[ea]<8: break
            if o=='s_nop 1':
                if ninstr()-last_cvt[0]<2: break
                ei+=1; continue
            if o.startswith('buffer_') or o=='POST' or slots(o)>room: break
            A(o); ei+=1; room-=slots(o)
            if 'cvt' in o: last_cvt[0]=ninstr()
    assert k==len(R) and pi==len(PQ) and len(bars)==16+E+(1 if split15 else 0)+(1 if tap0 else 0)
    if verbose: print("peak slots",peak[0],"of",NSLOT,"epilogue ops left",len(EQ)-ei,"of",len(EQ))
    stamp(True)
    while ei<len(EQ):
        ea,o,gi=EQ[ei]
        d=ninstr()-acc_done_at[ea]-(1 if stamps else 0)
        if d<8: A(f"s_nop {7-d}"); acc_done_at[ea]-=8
        e=EP[gi][1]
        if o=='POST': ei+=1
        elif e[1] and o==e[0][0]: A(e[1]); ei+=len(e[0])
        else: A(o); ei+=1
    if roll:
        L=A.L; Pd=barline[(8,0)]-barline[(5,0)]; a=barline[(5,0)]; b=a
        while L[a-1]==L[a-1+Pd]: a-=1
        while L[b]==L[b+Pd]: b+=1
        e=b+Pd
        while not L[e].strip().startswith('v_mfma'): e-=1
        while not L[a].strip().startswith('v_mfma'): a+=1
        n,rem=divmod(e-a,Pd)
        if roll=='whole': a+=rem; rem=0
        body=L[e-Pd:e]
        q=max(i for i in range(len(body)-1) if body[i].strip().startswith('v_mfma') and body[i+1].strip().startswith('v_mfma'))
        ent=(Pd-rem)%Pd
        if ent>q: a+=rem; rem=0; ent=0
        nb=body[:q+1]+["    s_sub_u32 s30, s30, 1","    s_cmp_lg_u32 s30, 0"]+body[q+1:]+["    s_cbranch_scc1 L_loop"]
        if rem: nb=["    s_branch L_ent","L_loop:"]+nb[:ent]+["L_ent:"]+nb[ent:]
        else: nb=["L_loop:"]+nb
        A.L=L[:a]+nb+L[e:]
        kk=A.L.index("    TOUCH_HERE"); A.L.insert(kk,f"    s_mov_b32 s30, {n+(1 if rem else 0)}")
        if verbose: print("rolled: period",Pd,"lines, count",n,"rem",rem,"head mfma",sum('v_mfma' in l for l in L[:a]),"tail mfma",sum('v_mfma' in l for l in L[e:]))
    if endwait: A("s_waitcnt vmcnt(0)")
    A("MAIN_END")
    if codepf>=2: A("L_fin:")
    if stamps:
        stamp(True); A("s_waitcnt vmcnt(0)"); stamp(True)
        A("s_memtime s[4:5]\ns_memrealtime s[6:7]\ns_waitcnt lgkmcnt(0)\nv_mov_b32 v2, 0")
        for i in range(nst[0]): A(f"v_writelane_b32 v2, s{STR[i]}, {i}")
        A(f"v_subrev_u32 v2, s{62 if rt else 60}, v2")
        if diag:
            base,mult,a,b,wg=diag
            A(f"s_nop 1\nv_readlane_b32 s54, v2, {b}")
            if a>=0: A(f"v_readlane_b32 s55, v2, {a}\ns_nop 3\ns_sub_u32 s54, s54, s55")
            A("s_nop 3")
            if mult>=1: A(f"s_mul_i32 s54, s54, {mult}")
            else: A("s_mov_b32 s54, 0")
            A(f"s_min_u32 s54, s54, 20000\ns_add_u32 s54, s54, {base}")
            if wg is not None: A(f"s_cmp_eq_u32 s2, {wg}\ns_cbranch_scc0 L_end")
            A("L_spin:\ns_memrealtime s[58:59]\ns_waitcnt lgkmcnt(0)\ns_sub_u32 s55, s58, s62\ns_cmp_lt_u32 s55, s54\ns_cbranch_scc1 L_spin\ns_endpgm")
        else:
            A("s_mov_b32 s48, s96\ns_and_b32 s49, s97, 0xffff\ns_mov_b32 s50, 0x100000\ns_mov_b32 s51, 0x20000")
            A(f"s_cmp_eq_u32 s25, {cwave}\ns_cbranch_scc0 L_end")
            A("s_sub_u32 s4, s4, s60\ns_getreg_b32 s5, hwreg(HW_REG_XCC_ID)\ns_lshl_b32 s26, s2, 7")
            A("v_mov_b32 v8, s4\nv_mov_b32 v9, s62\nv_mov_b32 v10, s6\nv_mov_b32 v11, s5\nv_lshl_add_u32 v12, v0, 2, s26")
            A("s_mov_b64 exec, 0xfffff\nbuffer_store_dword v2, v12, s[48:51], 0 offen offset:16")
            A("s_mov_b64 exec, 1\nbuffer_store_dwordx4 v[8:11], v12, s[48:51], 0 offen")
    A("L_end:\ns_endpgm")
    if lay2:
        A.L.remove("    TOUCH_HERE")
        i0=A.L.index("L_cons:"); end=A.L.index("    MAIN_END"); A.L.pop(end)
        import subprocess,tempfile,os,re
        def sizes(lines):
            src='.amdgcn_target "amdgcn-amd-amdhsa--gfx950"\n.text\n'+"\n".join(f"Z{k}:\n{l}" for k,l in enumerate(lines))+"\nL_end:\ns_endpgm\n"
            d=tempfile.mkdtemp(); open(d+"/a.s","w").write(src)
            subprocess.run(['clang','-x','assembler','-target','amdgcn-amd-amdhsa','-mcpu=gfx950','-c',d+'/a.s','-o',d+'/a.o'],check=True)
            o=subprocess.run(['llvm-objdump','-t',d+'/a.o'],capture_output=True,text=True).stdout
            return {int(m.group(2)):int(m.group(1),16) for m in re.finditer(r"(?m)^([0-9a-f]+) .* Z(\d+)$",o)}
        ad=sizes(A.L[i0:end]); out=A.L[:i0]; nt=1; extra=0; scc=False
        for k,l in enumerate(A.L[i0:]):
            if 's_cmp_lg_u32 s30' in l: scc=True
            if touch and k<end-i0 and not scc and ad[k]+extra>=4096*nt:
                out+=[f"L_t{nt}:","    s_cmp_eq_u32 s6, 1","    s_cbranch_scc1 L_cons"]; extra+=8; nt+=1
            if 's_cbranch_scc1 L_loop' in l: scc=False
            out.append(l)
        A.L=out; assert nt<=4
        kk=A.L.index("    TOUCH2_HERE"); TT=[]
        for i in range(1,nt): TT+=[f"    s_cmp_eq_u32 s25, {i}",f"    s_cbranch_scc1 L_t{i}"]
        A.L[kk:kk+1]=TT
    else:
        i0=A.L.index("L_main:"); p=0; nt=0; out=A.L[:i0+1]; done=not touch
        for l in A.L[i0+1:]:
            if l.strip()=='MAIN_END': done=True; continue
            if 'vcc' in l: done=True
            if not done and p>=4096*nt:
                out.append(f"L_t{nt}:"); out.append(f"    s_cbranch_vccnz L_tr"); p+=4; nt+=1
            out.append(l); p+=isz(l)
        A.L=out; assert nt<=4
        kk=A.L.index("    TOUCH_HERE")
        TT=["    s_mov_b64 vcc, -1"]
        for i in range(1,nt): TT+=[f"    s_cmp_eq_u32 s25, {i}",f"    s_cbranch_scc1 L_t{i}"]
        TT+=["    s_branch L_t0","L_tr:","    s_mov_b64 vcc, 0"]
        A.L[kk:kk+1]=TT if nt else []
    nv=F0+4*NSLOT
    A(f""".section .rodata,"a"
.p2align 6
.amdhsa_kernel {KN}
.amdhsa_next_free_vgpr {nv}
.amdhsa_next_free_sgpr 100
.amdhsa_accum_offset {nv}
.amdhsa_group_segment_fixed_size 0
.amdhsa_kernarg_size 72
.amdhsa_user_sgpr_count 2
.amdhsa_user_sgpr_kernarg_segment_ptr 1
.amdhsa_system_sgpr_workgroup_id_x 1
.amdhsa_float_denorm_mode_32 3
.end_amdhsa_kernel""")
    if jit:
        out=[]; nb=0
        for l in A.L:
            if l.strip()=='s_barrier':
                nb+=1; pre_,post_=jit(nb)
                def dl(spec,tag):
                    if not spec: return []
                    w,n=spec
                    return ["    s_cselect_b32 s98, 1, 0",f"    s_and_b32 s99, s25, {w[0]}",f"    s_cmp_eq_u32 s99, {w[1]}",f"    s_cbranch_scc0 L_j{tag}",f"    s_sleep {n}",f"L_j{tag}:","    s_cmp_eq_u32 s98, 1"]
                out+=dl(pre_,f"a{nb}")+[l]+dl(post_,f"b{nb}")
            else: out.append(l)
        A.L=out
    return A.text(), 512, LDS

def build_all(cfgs, base={}, out='args.txt'):
    from build import build
    args=[]
    for k,c in cfgs.items():
        t,blk,lds=gen(**{**base,**c})
        open(k+'.s','w').write(t); build(k+'.s')
        args.append(f"{k}.co {KN} 256 {blk} {lds}")
    open(out,'w').write(" ".join(args))
    print(", ".join('"work/'+k+'.co"' for k in cfgs))
```

```python
from final import *
c={'J1':dict(jit=lambda n:(None,((7,n%4),20))),'J3':dict(jit=lambda n:(None,((7,4+n%4),30))),
 'J4':dict(jit=lambda n:(((4,4),25),None)),'J5':dict(jit=lambda n:(((7,n%8),15),((3,(n*3)%4),9)))}
build_all(c,B,'args1.txt')
```

```python
import sys
KN='standalone__batchnorm__prompt_kernel'
XS=16640; WS=24576; NS=3
XCLS={0:0,3:34,1:66,2:98}
WB=NS*XS; PB=WB+NS*WS; LDS=PB+512

class G:
    def __init__(s): s.L=[]
    def __call__(s,t):
        for l in t.split('\n'):
            l=l.strip()
            if l: s.L.append(l if l.endswith(':') or l.startswith('.') or l.startswith(';') else '    '+l)
    def text(s): return '\n'.join(s.L)+'\n'

def tables_slot(slot):
    T=[]
    for r in range(16):
        o=[s for s in range(16) if s!=r]
        o.insert(r if slot[r] is None else slot[r], r)
        T.append(o)
    return T
TAB_A=tables_slot([None,0,0]+[s-2 for s in range(3,16)])

def isz(l):
    l=l.strip()
    if l.endswith(':') or l.startswith('.') or l.startswith(';'): return 0
    op=l.split()[0]
    if op.startswith(('v_mfma','ds_','buffer_','global_','v_pk_','v_fma_','v_cvt_pk','s_mem','v_writelane','v_readlane','v_lshl_add','s_load')) or 'dpp' in op: return 8
    if '0x' in l: return 8
    return 4

def triples(Q, tail, c6=None):
    T=[]
    n=0
    while n<32-Q:
        if c6 is not None and n>=c6 and n+1<32-Q:
            for f in range(4):
                g0=f%2
                T+=[(n,f,g0),(n+1,f,g0),(n+1,f,1-g0),(n,f,1-g0)]
            n+=2; continue
        for f in range(4):
            for g in ((0,1) if f%2==0 else (1,0)): T.append((n,f,g))
        n+=1
    ks=list(range(32-Q,32))
    if tail=='f':
        h=[n for n in ks if n<30]; l=[n for n in ks if n>=30]
        T+=[(n,0,0) for n in h]+[(n,0,1) for n in reversed(h)]+[(n,0,1) for n in l]+[(n,0,0) for n in reversed(l)]
        for f in (1,2,3):
            g0=(f+1)%2
            T+=[(n,f,g0) for n in ks]+[(n,f,1-g0) for n in reversed(ks)]
    elif tail=='f2':
        h=[n for n in ks if n<30]; l=[n for n in ks if n>=30]
        T+=[(n,0,0) for n in h]+[(n,0,1) for n in reversed(h)]+[(n,1,1) for n in h]
        T+=[(n,0,1) for n in l]+[(n,0,0) for n in reversed(l)]+[(n,1,1) for n in l]+[(n,1,0) for n in reversed(ks)]
        for f in (2,3):
            g0=f%2
            T+=[(n,f,g0) for n in ks]+[(n,f,1-g0) for n in reversed(ks)]
    elif isinstance(tail,(list,tuple)):
        for (f,g,ns) in tail: T+=[(n,f,g) for n in ns]
    return T

def tables_cb(slot, s0):
    T=[]
    for r in range(16):
        base=list(range(16))
        if r&1:
            for s in range(s0,16,2): base[s],base[s+1]=base[s+1],base[s]
        if slot[r] is not None:
            base.remove(r); base.insert(slot[r],r)
        T.append(base)
    return T

def tables_2l(cslot, d1, smin, slowx=True):
    T=[]
    for r in range(20 if slowx else 16):
        o=sorted(range(16),key=lambda s:(s-d1-0.5) if (s>=smin and s%4==r%4) else s)
        if r<16 and cslot[r] is not None:
            o.remove(r); o.insert(cslot[r],r)
        T.append(o)
    return T

def gen(stamps=False, rt=False, diag=None, store_flags='sc0 sc1', prio_c=0, prio_l=1, round_scale=True,
        tables=TAB_A, slowpf=1, kswap=1, E=1, b0mode=2, xmap=0, lstamp=False, lwave=7,
        Q=4, tail='f', LEAD=7, GAPB=6, cap_main=(1,4), cap_tail=(1,4), tail_from=26, cap_head=(2,4), touch=True, lite=False, verbose=False, overfill=0, nslot=46, lifo=False, roll=False, parhead=False, tailpf=0, taild=3, c6=None, head_to=24, split15=False, fake='', coal=0, pre=False, cwave=0, lay2=False, dbgpause={}, dbgwarm=None, parbar=(1,0), J=None, LEADM=None, lm_from=None, swap=None, tap0=False, codepf=0, xex=0, wex=None, jit=None, endwait=False, barsep=0, tapj=0, ooo=0):
    A=G()
    if diag: stamps=True
    A(f"; @launch grid=(256,1,1) block=(512,1,1) lds={LDS}")
    A("""; out[s,d] = silu(bn(sum_t sum_c x[s+t-1,c] * w[t,c,d])),  S=2048, C=D=1024.
;   into a 3-slot LDS ring; s_barrier hands stages over and frees slots.
; Waves 0-3 (consumers): 64x32 tile each, v_mfma_f32_16x16x32_bf16 with A = w^T (ds_read_b64_tr_b16) and
; The last k-steps run accumulator-major so that BN + SiLU + stores overlap the remaining MFMAs.""")
    A('.amdgcn_target "amdgcn-amd-amdhsa--gfx950"')
    A(f".text\n.globl {KN}\n.p2align 12\n.p2align 8\n.type {KN},@function\n{KN}:")
    A("s_load_dwordx16 s[80:95], s[0:1], 0")
    A("s_cmp_ge_u32 s2, 256\ns_cbranch_scc1 L_end")
    tm='s_memrealtime' if rt else 's_memtime'
    if stamps: A("s_memtime s[60:61]\ns_memrealtime s[62:63]\ns_load_dwordx2 s[96:97], s[0:1], 64")
    A("v_lshrrev_b32 v1, 6, v0\nv_and_b32 v0, 63, v0")
    if isinstance(xmap,(list,tuple)):
        assert sorted(xmap)==list(range(8))
        A(f"s_and_b32 s3, s2, 7\ns_lshl_b32 s3, s3, 2\ns_lshr_b32 s3, {sum(v<<(4*i) for i,v in enumerate(xmap)):#x}, s3")
        A("s_and_b32 s20, s3, 1\ns_bfe_u32 s3, s3, 0x20001\ns_lshr_b32 s21, s2, 3")
    else: A("s_and_b32 s20, s2, 1\ns_bfe_u32 s3, s2, 0x20001\ns_lshr_b32 s21, s2, 3")
    A("v_readfirstlane_b32 s25, v1")
    common_at=len(A.L)
    if xmap==3: A("s_xor_b32 s3, s3, 1")
    A("s_and_b32 s23, s21, 7\ns_lshl3_add_u32 s26, s20, s23\ns_lshl_b32 s22, s26, 7")
    A("s_lshr_b32 s23, s21, 3\ns_lshl2_add_u32 s27, s3, s23\ns_lshl_b32 s24, s27, 7")
    A(f"s_and_b32 s4, s26, {kswap}")
    if kswap>1: A("s_bcnt1_i32_b32 s4, s4\ns_and_b32 s4, s4, 1")
    if lay2:
        common=A.L[common_at:]
        pf=[]
        if codepf:
            pf=["s_cmp_eq_u32 s25, 3","s_cbranch_scc0 L_ncp","s_getpc_b64 s[8:9]","L_pc:",f"s_sub_u32 s8, s8, L_pc-{KN}","s_subb_u32 s9, s9, 0","s_lshl_b32 s10, s21, 9",
                "v_lshl_add_u32 v1, v0, 7, s10",f"v_min_u32 v1, L_end-{KN}, v1","s_mov_b64 exec, 15","global_load_dword v1, v1, s[8:9]","s_mov_b64 exec, -1","L_ncp:"]
            pf=[l if l.endswith(':') else '    '+l for l in pf]
        A.L[common_at:common_at]=["    s_mov_b32 s6, 1"]+pf+["    TOUCH2_HERE","    s_cmp_lt_u32 s25, 4","    s_cbranch_scc1 L_cons"]
    else: A("s_cmp_lt_u32 s25, 4\ns_cbranch_scc1 L_cons")
    nls=[0]
    def lst():
        if lstamp: A(f"{tm} s[{64+2*nls[0]}:{65+2*nls[0]}]"); nls[0]+=1
    if prio_l: A(f"s_setprio {prio_l}")
    A("s_and_b32 s23, s25, 3")
    A("v_lshrrev_b32 v3, 3, v0\nv_and_b32 v4, 7, v0\nv_lshrrev_b32 v5, 4, v0")
    A("s_lshl_b32 s28, s23, 5\ns_add_u32 s28, s28, s22")
    A("v_lshl_add_u32 v6, v3, 2, s28\nv_lshlrev_b32 v6, 11, v6")
    A("s_and_b32 s38, s23, 1\ns_lshl_b32 s38, s38, 2")
    A("v_add_u32 v7, s38, v5\nv_xor_b32 v7, v7, v4\nv_lshl_add_u32 v10, v7, 4, v6")
    pack=lambda T,o: sum(T[o+i]<<(4*i) for i in range(8))
    sg=list(range(16))
    if swap: sg[swap[0]],sg[swap[1]]=swap[1],swap[0]; assert min(swap)>0
    tables=[[sg[p] for p in T] for T in tables]
    for T in tables: assert sorted(T)==list(range(16))
    assert tables[0][0]==0
    A("s_add_u32 s39, s26, s27\ns_and_b32 s39, s39, 15")
    if slowpf and len(tables)==16: A("s_and_b32 s37, s27, 7\ns_cmp_eq_u32 s37, 3\ns_cselect_b32 s39, 16, s39")
    if slowpf and len(tables)==20:
        assert all(tables[16+q][0]==0 for q in range(4))
        A("s_and_b32 s37, s27, 7\ns_and_b32 s5, s39, 3\ns_add_u32 s5, s5, 16\ns_cmp_eq_u32 s37, 3\ns_cselect_b32 s39, s5, s39")
    firsts=[T[0] for T in tables]
    A(f"s_min_u32 s48, s39, 16\ns_lshl_b32 s48, s48, 2\ns_mov_b32 s40, {pack(firsts,0):#x}\ns_mov_b32 s41, {pack(firsts,8):#x}\ns_lshr_b64 s[40:41], s[40:41], s48")
    A("s_and_b32 s32, s40, 15\ns_lshl_b32 s33, s32, 17\ns_lshl_b32 s32, s32, 7")
    A(f"s_lshl_b32 s29, s23, 10\ns_mov_b32 m0, s29\ns_mov_b32 s10, 0x400000\ns_mov_b32 s11, 0x20000")
    A(f"v_add_u32 v13, {3*2048}, v10")
    A("s_lshl_b32 s28, s23, 3\ns_lshl_b32 s30, s4, 5\ns_add_u32 s28, s28, s30")
    A("v_add_u32 v6, s28, v3\nv_lshlrev_b32 v6, 11, v6\nv_add_u32 v6, s24, v6\nv_and_b32 v7, 1, v5\nv_lshlrev_b32 v7, 1, v7\nv_xor_b32 v7, s38, v7\nv_xor_b32 v7, v7, v4\nv_lshl_add_u32 v16, v7, 4, v6")
    A("v_cmp_gt_u32 vcc, 8, v0\ns_mov_b32 s30, 4096")
    A("s_add_u32 s28, s22, 128\ns_lshl_b32 s28, s28, 11\ns_sub_u32 s37, s22, 1\ns_lshl_b32 s37, s37, 11\ns_cmp_eq_u32 s22, 0\ns_cselect_b32 s37, 0x80000000, s37")
    A(f"v_lshl_add_u32 v8, v4, 4, s28\nv_xor_b32 v7, 7, v4\nv_lshl_add_u32 v9, v7, 4, s37\nv_cndmask_b32 v14, v9, v8, vcc")
    A(f"s_add_u32 s28, s29, {WB}\ns_mov_b32 s14, 0x600000\ns_mov_b32 s15, 0x20000")
    lst()
    A("s_waitcnt lgkmcnt(0)")
    lst()
    A("s_mov_b32 s8, s80\ns_and_b32 s9, s81, 0xffff")
    uid=[0]; issued=[]
    def ld_x(name,fill,first=False,hook=None):
        for i,cls in enumerate((0,3,1,2)):
            if hook: hook(i)
            if not (first and i==0):
                A(f"s_add_u32 m0, s29, {XCLS[cls]*128}"); A(fill.pop(0) if fill else "s_nop 0")
            A(f"buffer_load_dwordx4 v{10+cls}, s[8:11], s32 offen lds"); issued.append((name,0))
        uid[0]+=1
        A(f"s_cmp_lg_u32 s23, 0\ns_cbranch_scc1 L_nh{uid[0]}")
        A(f"s_mov_b32 m0, s30\ns_mov_b64 exec, 0xffff")
        A(f"buffer_load_dwordx4 v14, s[8:11], s32 offen lds\ns_mov_b64 exec, -1\nL_nh{uid[0]}:"); issued.append((name,1))
    def ld_w(name,ks,fill,hook=None):
        if 'd' in fake and name=='W1':
            for o in fill: A(o)
            return
        for t in range(3):
            if hook: hook(t)
            A(f"s_add_u32 m0, s28, {t*8192+ks*4096}"); A(fill.pop(0) if fill else "s_nop 0")
            A(f"buffer_load_dwordx4 v{16+ks*3+t}, s[12:15], s33 offen lds"); issued.append((name,0))
        if hook: hook(3)
    def wait_for(name):
        k=max(i for i,(p,h) in enumerate(issued) if p==name)
        n=sum(1 for p,h in issued[k+1:] if not h); nh=sum(1 for p,h in issued[k+1:] if h)
        if nh:
            uid[0]+=1
            A(f"s_waitcnt vmcnt({n+nh})\ns_cmp_eq_u32 s23, 0\ns_cbranch_scc1 L_wh{uid[0]}\ns_waitcnt vmcnt({n})\nL_wh{uid[0]}:")
        else: A(f"s_waitcnt vmcnt({n})")
    def slow_loads(st_reg):
        for t in range(3): A(f"s_load_dword s31, s[{50+2*t}:{51+2*t}], {st_reg}")
    A("; ---- slot 0")
    ld_x('X0',[f"v_add_u32 v11, {2048}, v10", f"v_add_u32 v12, {2*2048}, v10","s_mov_b32 s12, s82"],first=True)
    ld_w('W00',0,["s_and_b32 s13, s83, 0xffff",f"v_add_u32 v17, {1024*2048}, v16",f"v_add_u32 v18, {2048*2048}, v16"])
    ld_w('W01',1,[f"v_xor_b32 v{19+t}, {32*2048}, v{16+t}" for t in range(3)])
    lst()
    A("s_cmp_eq_u32 s23, 1\ns_cselect_b64 s[16:17], s[86:87], s[84:85]\ns_cmp_eq_u32 s23, 2\ns_cselect_b64 s[16:17], s[88:89], s[16:17]\ns_cmp_eq_u32 s23, 3\ns_cselect_b64 s[16:17], s[90:91], s[16:17]")
    A(f"s_and_b32 s17, s17, 0xffff\ns_mov_b32 s18, 2048\ns_mov_b32 s19, 0x20000\nv_lshlrev_b32 v6, 4, v0\ns_lshl_b32 s37, s23, 7\ns_add_u32 m0, s37, {PB}\ns_mov_b64 exec, 0xff")
    A("buffer_load_dwordx4 v6, s[16:19], s24 offen lds\ns_mov_b64 exec, -1"); issued.append(('P',0))
    if slowpf:
        A("; scalar-load prefetch into L2 of the lines that no workgroup fetches early (w columns 192..255 mod 512, and their x rows)")
        A("s_lshl2_add_u32 s38, s21, s23\ns_bitcmp1_b32 s3, 0\ns_cbranch_scc1 L_odd0")
        A("s_lshr_b32 s37, s38, 1\ns_lshl_b32 s37, s37, 11\ns_and_b32 s38, s38, 1\ns_lshl_b32 s38, s38, 6\ns_add_u32 s37, s37, s38")
        A(f"s_lshl_b32 s38, s3, 9\ns_add_u32 s37, s37, s38\ns_add_u32 s37, s37, 384")
        A("s_add_u32 s50, s82, s37\ns_addc_u32 s51, s83, 0\ns_add_u32 s52, s50, 0x200000\ns_addc_u32 s53, s51, 0\ns_add_u32 s54, s50, 0x400000\ns_addc_u32 s55, s51, 0")
        for st in range(1,slowpf+2):
            A(f"s_mov_b32 s34, {sg[st]*64*2048}"); slow_loads('s34')
        A(f"s_mov_b32 s35, {slowpf+1}\ns_branch L_pf0\nL_odd0:")
        A("s_lshl_b32 s37, s38, 11\ns_lshl_b32 s38, s20, 6\ns_add_u32 s37, s37, s38\ns_add_u32 s50, s80, s37\ns_addc_u32 s51, s81, 0")
        A("s_mov_b64 s[52:53], s[50:51]\ns_mov_b64 s[54:55], s[50:51]\ns_lshr_b32 s49, s3, 1\ns_lshl_b32 s49, s49, 3\ns_add_u32 s49, s49, 13")
        for st in range(1,slowpf+2+xex):
            A(f"s_add_u32 s34, s49, {st}\ns_and_b32 s34, s34, 15\ns_lshl_b32 s34, s34, 18\ns_load_dword s31, s[50:51], s34 offset:{sg[st]*128}")
        A(f"s_mov_b32 s35, {slowpf+1+xex}\nL_pf0:")
    if tailpf:
        A("s_lshl2_add_u32 s38, s26, s23\ns_lshr_b32 s37, s38, 1\ns_lshl_b32 s37, s37, 11\ns_and_b32 s38, s38, 1\ns_lshl_b32 s38, s38, 6\ns_add_u32 s37, s37, s38\ns_add_u32 s37, s37, s24")
        A("s_add_u32 s74, s82, s37\ns_addc_u32 s75, s83, 0\ns_add_u32 s76, s74, 0x200000\ns_addc_u32 s77, s75, 0\ns_add_u32 s78, s74, 0x400000\ns_addc_u32 s79, s75, 0")
        A(f"s_and_b32 s37, s27, 7\ns_cmp_eq_u32 s37, 3\ns_cselect_b32 s43, 16, {taild}")
    def tail_step():
        if not tailpf: return
        uid[0]+=1; u=uid[0]
        A(f"s_add_u32 s43, s43, 1\ns_cmp_ge_u32 s43, 16\ns_cbranch_scc1 L_not{u}\ns_add_u32 s34, s43, s27\ns_andn2_b32 s34, 1, s34\ns_lshl1_add_u32 s34, s43, s34\ns_lshl_b32 s34, s34, 16")
        for t in range(3-tailpf,3): A(f"s_load_dword s31, s[{74+2*t}:{75+2*t}], s34")
        A(f"L_not{u}:")
    ilo,ihi=pack(sg,0),pack(sg,8)
    A(f"s_mov_b32 s40, {ilo:#x}\ns_mov_b32 s41, {ihi:#x}")
    for r in range(len(tables)):
        lo,hi=pack(tables[r],0),pack(tables[r],8)
        if lo==ilo and hi==ihi: continue
        A(f"s_cmp_eq_u32 s39, {r}")
        if lo!=ilo: A(f"s_cselect_b32 s40, {lo:#x}, s40")
        if hi!=ihi: A(f"s_cselect_b32 s41, {hi:#x}, s41")
    def nxt(d):
        A("s_lshr_b64 s[40:41], s[40:41], 4\ns_and_b32 s32, s40, 15\ns_lshl_b32 s33, s32, 17\ns_lshl_b32 s32, s32, 7")
        A(f"s_add_u32 s29, s29, {d*XS}\ns_add_u32 s30, s30, {d*XS}\ns_add_u32 s28, s28, {d*WS}")
    def pf_step():
        if not slowpf: return
        uid[0]+=1; u=uid[0]
        A(f"s_add_u32 s35, s35, 1\ns_cmp_ge_u32 s35, 16\ns_cbranch_scc1 L_nosl{u}")
        st='s35'
        if swap:
            st='s46'; A(f"s_cmp_eq_u32 s35, {swap[0]}\ns_cselect_b32 s46, {swap[1]}, s35\ns_cmp_eq_u32 s35, {swap[1]}\ns_cselect_b32 s46, {swap[0]}, s46")
        A(f"s_bitcmp1_b32 s3, 0\ns_cbranch_scc1 L_odd{u}\ns_lshl_b32 s34, {st}, 17")
        slow_loads('s34'); A(f"s_branch L_nosl{u}\nL_odd{u}:")
        A(f"s_add_u32 s34, s49, s35\ns_and_b32 s34, s34, 15\ns_lshl_b32 s34, s34, 11\ns_add_u32 s34, s34, {st}\ns_lshl_b32 s34, s34, 7\ns_load_dword s31, s[50:51], s34")
        A(f"L_nosl{u}:")
    if J is not None:
        assert len(J)==2*E
        nxt(1)
        if tap0:
            k0=[i for i,(p,h) in enumerate(issued) if p=='W00'][0]; issued[k0]=('T0',0)
            if not tapj: wait_for('T0'); A("s_barrier")
        for e in range(1,E+1):
            def mk(need,at):
                def h(t):
                    if t==at: wait_for(need); lst() if e==1 else None; A("s_barrier")
                return h
            ld_x(f'X{e}',[],hook=(mk('T0',tapj) if (e==1 and tap0 and tapj) else None))
            ld_w(f'W{e}0',0,[],mk(f'W{e-1}0',J[2*e-2]))
            ld_w(f'W{e}1',1,[],mk('P' if (e==1 and parhead) else f'W{e-1}1',J[2*e-1]))
            if e>=2: pf_step()
            if e==wex: pf_step()
            nxt(-2 if e%3==2 else 1); p0=e+1
    else:
        nxt(1)
        ld_x('X1',[])
        if E>=1: wait_for('W00'); lst(); A("s_barrier")
        ld_w('W10',0,[])
        if E>=1 or b0mode==2: wait_for('P' if parhead else 'W01'); lst(); A("s_barrier")
        ld_w('W11',1,[])
        if E==0 and b0mode==0: wait_for('P' if parhead else 'W01'); lst(); A("s_barrier")
        tail_step()
        nxt(1); p0=2
        for e in range(2,E+1):
            ld_x(f'X{e}',[]); wait_for(f'W{e-1}0'); A("s_barrier")
            ld_w(f'W{e}0',0,[]); wait_for(f'W{e-1}1'); A("s_barrier")
            ld_w(f'W{e}1',1,[]); pf_step()
            nxt(-2 if e%3==2 else 1); p0=e+1
    A(f"s_mov_b32 s42, {p0}\ns_mov_b32 s36, {p0%3}\ns_mov_b32 m0, s29\ns_branch L_ld1")
    A("L_ld:\ns_barrier\nL_ld1:")
    issued.append(('prev',0))
    ld_x('X',["s_lshr_b64 s[40:41], s[40:41], 4","s_and_b32 s44, s40, 15","s_add_u32 s36, s36, 1"],first=True)
    A(f"s_cmp_eq_u32 s36, 3\ns_cselect_b32 s45, -2, 1\ns_cselect_b32 s36, 0, s36")
    ld_w('W0',0,[f"s_mul_i32 s38, s45, {XS}","s_lshl_b32 s32, s44, 7","s_add_u32 s29, s29, s38"])
    ld_w('W1',1,["s_add_u32 s30, s30, s38",f"s_mul_i32 s37, s45, {WS}","s_add_u32 s42, s42, 1"])
    A("s_add_u32 s28, s28, s37\ns_lshl_b32 s33, s44, 17\ns_mov_b32 m0, s29")
    pf_step(); tail_step()
    wait_for('prev')
    A("s_cmp_lt_u32 s42, 16\ns_cbranch_scc1 L_ld")
    A("s_barrier")
    xv=0
    if codepf>=2:
        A(f"s_getpc_b64 s[44:45]\nL_pc2:\ns_add_u32 s44, s44, L_fin-3072-L_pc2\ns_addc_u32 s45, s45, 0\ns_mul_i32 s37, s23, 768\nv_lshl_add_u32 v6, v0, 7, s37\ns_mov_b64 exec, 63\nglobal_load_dword v6, v6, s[44:45]"); xv=1
    if split15: A(f"s_waitcnt vmcnt({3+xv})\ns_barrier")
    A(f"s_waitcnt vmcnt({xv})")
    lst()
    A("s_barrier")
    if lstamp:
        A(f"s_waitcnt lgkmcnt(0)\ns_cmp_eq_u32 s25, {lwave}\ns_cbranch_scc0 L_end")
        A("s_mov_b32 s48, s96\ns_and_b32 s49, s97, 0xffff\ns_mov_b32 s50, 0x100000\ns_mov_b32 s51, 0x20000\ns_lshl_b32 s26, s2, 7\nv_mov_b32 v12, s26\ns_mov_b64 exec, 1")
        for i in range(nls[0]):
            A(f"s_sub_u32 s56, s{64+2*i}, s{62 if rt else 60}\nv_mov_b32 v13, s56\nbuffer_store_dword v13, v12, s[48:51], 0 offen offset:{100+4*i}\ns_nop 1")
    A("s_endpgm")
    if lay2: A(".p2align 12")
    A("L_cons:")
    if lay2: A("s_mov_b32 s6, 0"); A.L+=common
    if prio_c: A(f"s_setprio {prio_c}")
    A("v_and_b32 v14, 15, v0\nv_lshrrev_b32 v15, 4, v0")
    A("v_add_u32 v16, 4, v14\nv_bfe_u32 v16, v16, 3, 1\nv_and_b32 v17, 7, v14\nv_lshl_add_u32 v16, v17, 1, v16")
    A("s_lshr_b32 s29, s25, 1\ns_and_b32 s27, s25, 1")
    A("s_lshl_b32 s28, s29, 4\nv_add_u32 v16, s28, v16")
    A("s_lshl_b32 s28, s4, 2\nv_xor_b32 v21, s28, v15")
    for sh in range(3):
        A(f"v_add_u32 v17, {sh-1}, v16\nv_bfe_u32 v18, v17, 1, 3\nv_xor_b32 v18, v18, v21\nv_lshlrev_b32 v18, 4, v18\nv_lshl_add_u32 v{2+2*sh}, v17, 7, v18")
        if sh==0: A(f"v_add_u32 v2, {34*128}, v2")
        A(f"v_xor_b32 v{3+2*sh}, 64, v{2+2*sh}")
    A("v_bfe_u32 v17, v0, 2, 2\nv_lshl_add_u32 v18, v15, 3, v17\nv_lshlrev_b32 v18, 7, v18")
    A("v_and_b32 v19, 3, v0\nv_lshl_add_u32 v18, v19, 3, v18")
    A(f"v_and_b32 v20, 1, v17\nv_lshl_add_u32 v20, v20, 2, v15\nv_lshl_add_u32 v20, v20, 2, v19\ns_lshl_b32 s28, s27, 6\ns_add_u32 s28, s28, {PB}\nv_lshl_add_u32 v13, v20, 1, s28")
    A("v_lshrrev_b32 v17, 1, v17\nv_and_b32 v19, 1, v15\nv_lshl_or_b32 v17, v19, 1, v17")
    A("s_lshl_b32 s28, s27, 1\nv_xor_b32 v17, s28, v17\nv_lshl_add_u32 v8, v17, 5, v18")
    A(f"v_add_u32 v8, {WB}, v8\nv_xor_b32 v9, 32, v8\nv_add_u32 v10, {2*WS}, v8\nv_add_u32 v11, {2*WS}, v9")
    A("v_lshlrev_b32 v17, 2, v16\nv_add_u32 v17, s22, v17\nv_lshlrev_b32 v17, 11, v17")
    A("v_and_b32 v18, 1, v15\nv_lshlrev_b32 v18, 5, v18\nv_lshrrev_b32 v19, 1, v15\nv_lshl_add_u32 v18, v19, 4, v18")
    A("s_lshl_b32 s28, s27, 6\ns_add_u32 s28, s28, s24\nv_add3_u32 v12, v17, v18, s28")
    A("s_mov_b32 s18, 0x400000\ns_mov_b32 s19, 0x20000\ns_mov_b32 s58, 4096\ns_mov_b32 s59, 0xbfb8aa3b")
    A("s_waitcnt lgkmcnt(0)")
    A("s_mov_b32 s16, s92\ns_and_b32 s17, s93, 0xffff")
    if coal:
        A("v_and_b32 v14, 12, v0\nv_bfe_u32 v17, v0, 4, 1\nv_lshl_or_b32 v14, v17, 1, v14\nv_lshrrev_b32 v17, 5, v0\nv_or_b32 v14, v14, v17")
        A("v_add_u32 v16, 4, v14\nv_bfe_u32 v16, v16, 3, 1\nv_and_b32 v17, 7, v14\nv_lshl_add_u32 v16, v17, 1, v16\ns_lshl_b32 s5, s29, 6\ns_add_u32 s5, s5, s22")
        A("v_lshl_add_u32 v16, v16, 2, s5\nv_lshlrev_b32 v16, 11, v16\nv_and_b32 v17, 1, v0\nv_lshlrev_b32 v17, 5, v17\nv_and_b32 v18, 2, v0\nv_lshl_add_u32 v17, v18, 3, v17\nv_add3_u32 v14, v16, v17, s28")
        A("s_mov_b32 s8, 0x55555555\ns_mov_b32 s9, s8\ns_mov_b32 s10, 0x33333333\ns_mov_b32 s11, s10")
    if 'x' in fake: A("v_lshlrev_b32 v15, 4, v15\nv_bfe_u32 v14, v0, 3, 1\nv_lshl_add_u32 v15, v14, 7, v15")
    A("TOUCH_HERE")
    if not lay2: A("s_branch L_main\n.p2align 12")
    if dbgwarm:
        nw,gap=dbgwarm
        A("s_mov_b32 s12, 0x9e3779b1\nv_add_u32 v72, 77, v0")
        for r in range(73,104): A(f"v_mul_lo_u32 v{r}, v{r-1}, s12")
        for r in range(72,104): A(f"v_and_b32 v{r}, 0xbdffbdff, v{r}\nv_or_b32 v{r}, 0x38003800, v{r}")
        A(f"s_mov_b32 s13, {nw}\nL_warm:")
        for q in range(8):
            A(f"v_mfma_f32_16x16x32_bf16 v[{16+4*q}:{19+4*q}], v[{72+4*q}:{75+4*q}], v[{72+4*((q*3+1)%8)}:{75+4*((q*3+1)%8)}], 0")
            if gap: A(f"s_nop {gap}")
        A("s_sub_u32 s13, s13, 1\ns_cmp_lg_u32 s13, 0\ns_cbranch_scc1 L_warm")
    A("L_main:")
    ACC=lambda f,g: 16+(f*2+g)*4
    SC=48; SH=56; T=64; P=68; F0=72; NSLOT=nslot
    M=[]; prev=None
    for (n,f,g) in triples(Q,tail,c6):
        best=None
        for ts in ((0,1,2),(2,1,0)):
            w=('W',n,ts[0],g); x=('X',n,f+ts[0])
            sc=(prev is not None and (w==prev[0] or x==prev[1]))
            if best is None or sc>best[0]: best=(sc,ts)
        for t in best[1]:
            M.append(((f,g),('W',n,t,g),('X',n,f+t))); prev=(M[-1][1],M[-1][2])
    if tap0: M[:24]=[m for m in M[:24] if m[1][2]==0]+[m for m in M[:24] if m[1][2]!=0]
    NM=len(M); assert NM==768 and len(set(M))==768
    first={}; last={}; acc_last={}
    for i,(a,w,x) in enumerate(M):
        for fr in (w,x): first.setdefault(fr,i); last[fr]=i
        acc_last[a]=i
    def grp(fr):
        n=fr[1]; st=n>>1
        if tap0 and n==0 and fr[0]=='W' and fr[2]>0: return (0,2)
        return (st,1) if ((st<E or (split15 and st==15)) and fr[0]!='X' and n&1) else (st,0)
    R=[]
    for fr in sorted(first,key=lambda q:first[q]):
        if fr[0]=='X': R.append([fr,0,4,first[fr]])
        else: R+= [[fr,0,2,first[fr]],[fr,1,2,first[fr]]]
    PAR_AT=30 if parhead else 48*3+20; PN=1 if parhead else 6
    for k in range(4): R.append([('P',PN,k),0,2,PAR_AT])
    R.sort(key=lambda r:(min(r[0][1]>>1,13),r[3]))
    pos=[0]*len(R); cur=NM; cnt=0; cost=0
    for k in range(len(R)-1,-1,-1):
        fr,h,c,dl=R[k]
        lim=dl-(LEADM if (LEADM and (lm_from if lm_from is not None else E)<=(fr[1]>>1)<14) else LEAD)
        if k+1<len(R):
            s0,s1=fr[1]>>1,R[k+1][0][1]>>1
            if s0<s1 and s1<=13: lim=min(lim,pos[k+1]-GAPB)
        if lim<cur: cur=lim; cnt=0; cost=0
        cap=cap_tail if cur>=tail_from*24 else (cap_head if cur<head_to else cap_main)
        if cnt+1>cap[0] or cost+c>cap[1]: cur-=1; cnt=0; cost=0
        pos[k]=cur; cnt+=1; cost+=c
    for k in range(len(R)):
        if R[k][0][1]>=1: pos[k]=max(pos[k],0)
        if tap0 and (grp(R[k][0])==(0,2) or (k and pos[k-1]>=0)): pos[k]=max(pos[k],tap0)
    def rnd(v): return [[f"v_cvt_pk_bf16_f32 {v}, {v}, {v}"],[f"v_lshlrev_b32 {v}, 16, {v}"]] if round_scale else []
    m_,v_,g_,b_=[f"v{T+k}" for k in range(4)]
    par=[[f"v_lshlrev_b32 v{T+k}, 16, v{T+k}"] for k in range(4)]
    par+=[[f"v_add_f32 {v_}, 0x3727c5ac, {v_}"]]+rnd(v_)+[[f"v_sqrt_f32 {v_}, {v_}"]]+rnd(v_)+[[f"v_rcp_f32 {v_}, {v_}"]]+rnd(v_)+[[f"v_mul_f32 {v_}, {g_}, {v_}"]]+rnd(v_)
    par+=[[f"v_fma_f32 {b_}, -{m_}, {v_}, {b_}"],[f"v_mul_f32 {v_}, s59, {v_}"],[f"v_mul_f32 {b_}, s59, {b_}"],[],[]]
    for k in range(8): par+=[[f"v_mov_b32_dpp v{SC+k}, {v_} row_newbcast:{k} row_mask:0xf bank_mask:0xf"],[f"v_mov_b32_dpp v{SH+k}, {b_} row_newbcast:{k} row_mask:0xf bank_mask:0xf"]]
    done_g={}
    def epi(f,g):
        a=ACC(f,g); X=[]
        pr=lambda r,k: f"v[{r+k}:{r+k+1}]"
        for k in (0,2): X.append(([f"v_fma_f32 v{a+j}, v{a+j}, v{SC+4*g+j}, v{SH+4*g+j}" for j in (k,k+1)], f"v_pk_fma_f32 {pr(a,k)}, {pr(a,k)}, {pr(SC+4*g,k)}, {pr(SH+4*g,k)}"))
        for k in range(4): X.append(([f"v_exp_f32 v{T+k}, v{a+k}"],None))
        for k in (0,2): X.append(([f"v_fma_f32 v{T+j}, v{T+j}, s59, s59" for j in (k,k+1)], f"v_pk_fma_f32 {pr(T,k)}, {pr(T,k)}, s[58:59], s[58:59] op_sel:[0,1,1] op_sel_hi:[1,1,1]"))
        for k in range(4): X.append(([f"v_rcp_f32 v{T+k}, v{T+k}"],None))
        for k in (0,2): X.append(([f"v_mul_f32 v{a+j}, v{a+j}, v{T+j}" for j in (k,k+1)], f"v_pk_mul_f32 {pr(a,k)}, {pr(a,k)}, {pr(T,k)}"))
        X.append(([f"v_cvt_pk_bf16_f32 v{P+2*g+j}, v{a+2*j}, v{a+2*j+1}" for j in (0,1)],None))
        done_g.setdefault(f,set()).add(g)
        if len(done_g[f])==2:
            co=f>=4-coal
            if co and 'c' not in fake:
                dp=lambda d,s0,s1,q: f"v_cndmask_b32_dpp v{d}, v{s0}, v{s1}, vcc quad_perm:{q} row_mask:0xf bank_mask:0xf"
                X.append((["POST","s_mov_b64 vcc, s[8:9]","s_nop 0",dp(T,P+2,P,'[1,0,3,2]'),dp(T+1,P+3,P+1,'[1,0,3,2]'),"s_not_b64 vcc, vcc",dp(P+2,P,P+2,'[1,0,3,2]'),dp(P+3,P+1,P+3,'[1,0,3,2]'),
                     "s_mov_b64 vcc, s[10:11]",f"v_permlane32_swap_b32 v{T}, v{P+2}",f"v_permlane32_swap_b32 v{T+1}, v{P+3}","s_nop 0",
                     dp(P,P+2,T,'[2,3,0,1]'),dp(P+1,P+3,T+1,'[2,3,0,1]'),"s_not_b64 vcc, vcc",dp(P+2,T,P+2,'[2,3,0,1]'),dp(P+3,T+1,P+3,'[2,3,0,1]')],None))
            X.append((["s_nop 0" if co else "s_nop 1",f"v_permlane16_swap_b32 v{P}, v{P+2}",f"v_permlane16_swap_b32 v{P+1}, v{P+3}",
                   f"buffer_store_dwordx4 v[{P}:{P+3}], v{14 if co else 12}, s[16:19], {'s58' if f>=2 else '0'} offen offset:{(f&1)*2048} {store_flags if isinstance(store_flags,str) else store_flags[f]}"],None))
        return X
    EP=[(a,e) for a in sorted(acc_last,key=lambda a:acc_last[a]) for e in epi(*a)]
    STR=list(range(32,58,2))+list(range(64,80,2)); nst=[0]
    def stamp(force=False):
        if stamps and (force or not lite): A(f"{tm} s[{STR[nst[0]]}:{STR[nst[0]]+1}]"); nst[0]+=1
    PREF={}
    if c6 is not None:
        iv={}
        for kk,(fr,h,c_,dl) in enumerate(R):
            if fr[0]!='P' and 12<=fr[1]<18 and h==0: iv[fr]=(pos[kk],last[fr]+2)
        occ=[[False]*144 for _ in range(NSLOT)]
        for fr in sorted(iv,key=lambda q:iv[q][0]):
            a_,b_=iv[fr]; cells=[t%144 for t in range(a_,b_)]
            sl_=next(q for q in range(NSLOT) if not any(occ[q][t] for t in cells))
            for t in cells: occ[sl_][t]=True
            PREF[(fr[0],fr[1]%6)+fr[2:]]=sl_
        if verbose: print("periodic slots used",max(PREF.values())+1)
    free=list(range(NSLOT)); slot={}; peak=[0]
    barline={}; nread=[0]; ridx={}; covered=[0]; bars=set(); rpos=[]; ninstr=lambda: len(A.L); acc_done_at={}
    def reg(fr): return F0+4*slot[fr]
    def wait_upto(k,now):
        if k<=covered[0]: return
        kk=k
        while kk<nread[0] and rpos[kk]<=now-LEAD: kk+=1
        kk=max(kk,nread[0]-14)
        A(f"s_waitcnt lgkmcnt({nread[0]-kk})"); covered[0]=kk
    def do_bar(b,now):
        if b[1]==0 and 1<=b[0]<=13 and covered[0]<nread[0]: A("s_waitcnt lgkmcnt(0)"); covered[0]=nread[0]
        if parhead and b==parbar:
            for o in par:
                if not o: continue
                if 'dpp' in o[0] and 'dpp' not in A.L[-1] : A("s_nop 1")
                A(o[0])
                if o[0].startswith(('v_sqrt','v_rcp')): A("s_nop 0")
        if b in dbgpause: A(f"s_sleep {dbgpause[b]}")
        if pre and b[0]<=2: stamp(True)
        A("s_barrier"); bars.add(b); barline[b]=len(A.L)-1
        if pre and (b==(0,1) or (lite and b in ((1,0),(2,0)))): stamp(True)
        if b[1]==0: stamp(force=b[0] in (0,14))
        if verbose: print("barrier",b,"after mfma",now)
    def do_read(k,now):
        fr,h,c,dl=R[k]; b=grp(fr)
        if b not in bars: do_bar(b,now)
        n=fr[1]; st=n>>1; ks=n&1; sl=st%NS
        if fr[0]=='P': A(f"ds_read_u16 v{T+fr[2]}, v13 offset:{128*fr[2]}")
        else:
            if h==0:
                assert free, ("out of fragment registers", now)
                pref=((n&1) if (c6 is None and not (LEADM and LEADM>14)) else (n%3))*12+(fr[2] if fr[0]=='X' else 6+fr[2]*2+fr[3])
                if PREF: pref=PREF[(fr[0],n%6)+fr[2:]]
                if PREF and pref not in free and n<24: pref=max(free)
                slot[fr]=free.pop(free.index(pref) if (lifo and pref in free) else 0); peak[0]=max(peak[0],NSLOT-len(free))
            r=reg(fr)
            if 'x' in fake and 3<=n<29 and fr[0]=='X' and fr[2]==5:
                ridx[fr]=-1; return
            if 'x' in fake and 3<=n<29 and fr[0]=='X' and fr[2]==0:
                A(f"ds_read_b128 v[68:71], v15 offset:{sl*XS}"); ridx[fr]=nread[0]; nread[0]+=1; rpos.append(now); return
            if 'r' in fake and 3<=n<29 and ((fr[0]=='W' and n&1) or (fr[0]=='X' and fr[2]==5)):
                ridx[fr]=-1; return
            if fr[0]=='X':
                j=fr[2]; sh=0 if j==0 else (2 if j==5 else 1)
                A(f"ds_read_b128 v[{r}:{r+3}], v{2+2*sh+ks} offset:{sl*XS+(0 if j in (0,1,5) else XCLS[j-1]*128)}")
            else:
                t,g=fr[2],fr[3]
                A(f"ds_read_b64_tr_b16 v[{r+2*h}:{r+2*h+1}], v{8+g+2*(sl//2)} offset:{(sl%2)*WS+t*8192+ks*4096+h*512}")
        ridx[fr]=nread[0]; nread[0]+=1; rpos.append(now)
    k=0; started=set()
    PQ=[] if parhead else [(o[0] if o else None) for o in par]
    EQ=[]
    for gi,(ea,e) in enumerate(EP):
        for o in e[0]: EQ.append((ea,o,gi))
    pi=0; ei=0; last_cvt=[-9]; fk=[0]
    slots=lambda o: 2 if o.startswith(('v_exp','v_rcp','v_sqrt','buffer_')) else 1
    def need(i): return max(ridx[M[i][1]],ridx[M[i][2]])+1
    while k<len(R) and pos[k]<0: do_read(k,-1); k+=1
    wait_upto(need(0),0)
    for i,(a,w,x) in enumerate(M):
        assert need(i)<=covered[0]
        ar=ACC(*a); c=f"v[{ar}:{ar+3}]" if a in started else "0"; started.add(a)
        A(f"v_mfma_f32_16x16x32_bf16 v[{ar}:{ar+3}], v[{reg(w)}:{reg(w)+3}], v[{reg(x)}:{reg(x)+3}], {c}")
        if acc_last[a]==i: acc_done_at[a]=ninstr()
        if i>=2:
            for fr in M[i-2][1:]:
                if last[fr]==i-2: free.append(slot[fr])
        n0=ninstr(); nr=0
        while k<len(R) and pos[k]<=i: do_read(k,i); k+=1; nr+=1
        if barsep and nr==0 and k<len(R) and pos[k]==i+1:
            b=grp(R[k][0])
            if b not in bars and b[1]==0 and 1<=b[0]<=13:
                if barsep==1:
                    if covered[0]<nread[0]: A("s_waitcnt lgkmcnt(0)"); covered[0]=nread[0]
                else: do_bar(b,i)
        if i+1<NM: wait_upto(need(i+1),i+1)
        if i==PAR_AT and not parhead: wait_upto(ridx[('P',PN,3)]+1,i)
        used=(ninstr()-n0)+nr
        if i==NM-1: break
        if used==0 and ei<len(EQ) and EQ[ei][1].startswith('buffer_'):
            A(EQ[ei][1]); ei+=1; used=2
        room=3-max(used,1)+(1 if (overfill and i%overfill==0) else 0)
        if 'v' in fake and 72<=i<29*24:
            if i%24==0: fk[0]=8
            while fk[0]>0 and room>0:
                fk[0]-=1; room-=1; q=fk[0]&3
                if fk[0]>=4: A(f"v_cndmask_b32_dpp v{64+q}, v{reg(x)+q}, v{reg(w)+q}, vcc row_shr:1 row_mask:0xf bank_mask:0xf bound_ctrl:1")
                else: A(f"v_mov_b32_dpp v{64+q}, v{reg(w)+q} row_shl:1 row_mask:0xf bank_mask:0xf")
        if i>=PAR_AT and pi<len(PQ):
            o=PQ[pi]
            if o is None: pi+=1
            elif slots(o)<=room: A(o); pi+=1
        while ei<len(EQ) and room>0:
            ea,o,gi=EQ[ei]
            if ea not in acc_done_at or ninstr()-acc_done_at[ea]<8: break
            if o=='s_nop 1':
                if ninstr()-last_cvt[0]<2: break
                ei+=1; continue
            if o.startswith('buffer_') or o=='POST' or slots(o)>room: break
            A(o); ei+=1; room-=slots(o)
            if 'cvt' in o: last_cvt[0]=ninstr()
    assert k==len(R) and pi==len(PQ) and len(bars)==16+E+(1 if split15 else 0)+(1 if tap0 else 0)
    if verbose: print("peak slots",peak[0],"of",NSLOT,"epilogue ops left",len(EQ)-ei,"of",len(EQ))
    stamp(True)
    if ooo:
        import re
        ops=[]; seen=[]; fs=[]
        started_acc=EQ[ei][0] if (ei>0 and EQ[ei-1][0]==EQ[ei][0]) else None
        firstf=EQ[ei][0][0]
        busy=set(range(reg(M[-1][1]),reg(M[-1][1])+4))|set(range(reg(M[-1][2]),reg(M[-1][2])+4))|set(range(reg(M[-2][1]),reg(M[-2][1])+4))|set(range(reg(M[-2][2]),reg(M[-2][2])+4))
        pool=[r for r in range(F0,F0+4*NSLOT,4) if r not in busy]
        tmap={}; pmap={}
        while ei<len(EQ):
            ea,o,gi=EQ[ei]; e=EP[gi][1]
            if o=='POST' or o.startswith('s_nop'): ei+=1; continue
            if e[1] and o==e[0][0]: o=e[1]; ei+=len(e[0])
            else: ei+=1
            if ea not in tmap: tmap[ea]=T if ea==started_acc else pool.pop(0)
            if ea[0] not in pmap: pmap[ea[0]]=P if ea[0]==firstf else pool.pop(0)
            rn=lambda r: tmap[ea]+r-T if T<=r<T+4 else (pmap[ea[0]]+r-P if P<=r<P+4 else r)
            o=re.sub(r'v\[(\d+):(\d+)\]',lambda m:f"v[{rn(int(m.group(1)))}:{rn(int(m.group(2)))}]",o)
            o=re.sub(r'\bv(\d+)\b',lambda m:f"v{rn(int(m.group(1)))}",o)
            ops.append((ea,o))
        def rw(o):
            op,_,rest=o.partition(' '); tk=[x.strip().split()[0] for x in rest.split(',') if x.strip()]
            def rg(t):
                m=re.fullmatch(r'v\[(\d+):(\d+)\]',t)
                if m: return set(range(int(m.group(1)),int(m.group(2))+1))
                m=re.fullmatch(r'-?v(\d+)',t)
                if m: return {int(m.group(1))}
                return {'vcc'} if t=='vcc' else set()
            allr=[rg(t) for t in tk]
            if op.startswith('buffer_'): return set().union(*allr),{'mem'}
            if 'permlane' in op: return allr[0]|allr[1],allr[0]|allr[1]
            return set().union(*allr[1:]),allr[0]
        info=[rw(o) for _,o in ops]; left=list(range(len(ops))); wr_at={}
        for r in range(0,256): wr_at[r]=(ninstr()-1,True)
        while left:
            pick=None; fallback=None
            for q in left[:ooo]:
                Rq,Wq=info[q]
                if any((info[p][1]&(Rq|Wq)) or (info[p][0]&Wq) for p in left if p<q): continue
                ea,o=ops[q]; now=ninstr()-(0)
                hard=0
                if any(16<=r<48 for r in (Rq|Wq) if isinstance(r,int)): hard=max(hard,8-(now-acc_done_at[ea]-(1 if stamps else 0)))
                soft=0
                for r in Rq:
                    if r in wr_at and isinstance(r,int):
                        d=now-wr_at[r][0]
                        if 'permlane' in o or 'dpp' in o: hard=max(hard,2-d)
                        if wr_at[r][1] and not o.startswith(('v_exp','v_rcp')): hard=max(hard,1-d)
                        soft=max(soft,2-d)
                if hard<=0 and soft<=0: pick=q; break
                if fallback is None or (hard,soft)<fallback[0]: fallback=((hard,soft),q)
            if pick is None:
                pick=fallback[1]
                for z in range(max(0,fallback[0][0])): A("s_nop 0")
            A(ops[pick][1]); left.remove(pick)
            for r in info[pick][1]: wr_at[r]=(ninstr(),ops[pick][1].startswith(('v_exp','v_rcp')))
    while ei<len(EQ):
        ea,o,gi=EQ[ei]
        d=ninstr()-acc_done_at[ea]-(1 if stamps else 0)
        if d<8: A(f"s_nop {7-d}"); acc_done_at[ea]-=8
        e=EP[gi][1]
        if o=='POST': ei+=1
        elif e[1] and o==e[0][0]: A(e[1]); ei+=len(e[0])
        else: A(o); ei+=1
    if roll:
        L=A.L; Pd=barline[(8,0)]-barline[(5,0)]; a=barline[(5,0)]; b=a
        while L[a-1]==L[a-1+Pd]: a-=1
        while L[b]==L[b+Pd]: b+=1
        e=b+Pd
        while not L[e].strip().startswith('v_mfma'): e-=1
        while not L[a].strip().startswith('v_mfma'): a+=1
        n,rem=divmod(e-a,Pd)
        if roll=='whole': a+=rem; rem=0
        body=L[e-Pd:e]
        q=max(i for i in range(len(body)-1) if body[i].strip().startswith('v_mfma') and body[i+1].strip().startswith('v_mfma'))
        ent=(Pd-rem)%Pd
        if ent>q: a+=rem; rem=0; ent=0
        nb=body[:q+1]+["    s_sub_u32 s30, s30, 1","    s_cmp_lg_u32 s30, 0"]+body[q+1:]+["    s_cbranch_scc1 L_loop"]
        if rem: nb=["    s_branch L_ent","L_loop:"]+nb[:ent]+["L_ent:"]+nb[ent:]
        else: nb=["L_loop:"]+nb
        A.L=L[:a]+nb+L[e:]
        kk=A.L.index("    TOUCH_HERE"); A.L.insert(kk,f"    s_mov_b32 s30, {n+(1 if rem else 0)}")
        if verbose: print("rolled: period",Pd,"lines, count",n,"rem",rem,"head mfma",sum('v_mfma' in l for l in L[:a]),"tail mfma",sum('v_mfma' in l for l in L[e:]))
    if endwait: A("s_waitcnt vmcnt(0)")
    A("MAIN_END")
    if codepf>=2: A("L_fin:")
    if stamps:
        stamp(True); A("s_waitcnt vmcnt(0)"); stamp(True)
        A("s_memtime s[4:5]\ns_memrealtime s[6:7]\ns_waitcnt lgkmcnt(0)\nv_mov_b32 v2, 0")
        for i in range(nst[0]): A(f"v_writelane_b32 v2, s{STR[i]}, {i}")
        A(f"v_subrev_u32 v2, s{62 if rt else 60}, v2")
        if diag:
            base,mult,a,b,wg=diag
            A(f"s_nop 1\nv_readlane_b32 s54, v2, {b}")
            if a>=0: A(f"v_readlane_b32 s55, v2, {a}\ns_nop 3\ns_sub_u32 s54, s54, s55")
            A("s_nop 3")
            if mult>=1: A(f"s_mul_i32 s54, s54, {mult}")
            else: A("s_mov_b32 s54, 0")
            A(f"s_min_u32 s54, s54, 20000\ns_add_u32 s54, s54, {base}")
            if wg is not None: A(f"s_cmp_eq_u32 s2, {wg}\ns_cbranch_scc0 L_end")
            A("L_spin:\ns_memrealtime s[58:59]\ns_waitcnt lgkmcnt(0)\ns_sub_u32 s55, s58, s62\ns_cmp_lt_u32 s55, s54\ns_cbranch_scc1 L_spin\ns_endpgm")
        else:
            A("s_mov_b32 s48, s96\ns_and_b32 s49, s97, 0xffff\ns_mov_b32 s50, 0x100000\ns_mov_b32 s51, 0x20000")
            A(f"s_cmp_eq_u32 s25, {cwave}\ns_cbranch_scc0 L_end")
            A("s_sub_u32 s4, s4, s60\ns_getreg_b32 s5, hwreg(HW_REG_XCC_ID)\ns_lshl_b32 s26, s2, 7")
            A("v_mov_b32 v8, s4\nv_mov_b32 v9, s62\nv_mov_b32 v10, s6\nv_mov_b32 v11, s5\nv_lshl_add_u32 v12, v0, 2, s26")
            A("s_mov_b64 exec, 0xfffff\nbuffer_store_dword v2, v12, s[48:51], 0 offen offset:16")
            A("s_mov_b64 exec, 1\nbuffer_store_dwordx4 v[8:11], v12, s[48:51], 0 offen")
    A("L_end:\ns_endpgm")
    if lay2:
        A.L.remove("    TOUCH_HERE")
        i0=A.L.index("L_cons:"); end=A.L.index("    MAIN_END"); A.L.pop(end)
        import subprocess,tempfile,os,re
        def sizes(lines):
            src='.amdgcn_target "amdgcn-amd-amdhsa--gfx950"\n.text\n'+"\n".join(f"Z{k}:\n{l}" for k,l in enumerate(lines))+"\nL_end:\ns_endpgm\n"
            d=tempfile.mkdtemp(); open(d+"/a.s","w").write(src)
            subprocess.run(['clang','-x','assembler','-target','amdgcn-amd-amdhsa','-mcpu=gfx950','-c',d+'/a.s','-o',d+'/a.o'],check=True)
            o=subprocess.run(['llvm-objdump','-t',d+'/a.o'],capture_output=True,text=True).stdout
            return {int(m.group(2)):int(m.group(1),16) for m in re.finditer(r"(?m)^([0-9a-f]+) .* Z(\d+)$",o)}
        ad=sizes(A.L[i0:end]); out=A.L[:i0]; nt=1; extra=0; scc=False
        for k,l in enumerate(A.L[i0:]):
            if 's_cmp_lg_u32 s30' in l: scc=True
            if touch and k<end-i0 and not scc and ad[k]+extra>=4096*nt:
                out+=[f"L_t{nt}:","    s_cmp_eq_u32 s6, 1","    s_cbranch_scc1 L_cons"]; extra+=8; nt+=1
            if 's_cbranch_scc1 L_loop' in l: scc=False
            out.append(l)
        A.L=out; assert nt<=4
        kk=A.L.index("    TOUCH2_HERE"); TT=[]
        for i in range(1,nt): TT+=[f"    s_cmp_eq_u32 s25, {i}",f"    s_cbranch_scc1 L_t{i}"]
        A.L[kk:kk+1]=TT
    else:
        i0=A.L.index("L_main:"); p=0; nt=0; out=A.L[:i0+1]; done=not touch
        for l in A.L[i0+1:]:
            if l.strip()=='MAIN_END': done=True; continue
            if 'vcc' in l: done=True
            if not done and p>=4096*nt:
                out.append(f"L_t{nt}:"); out.append(f"    s_cbranch_vccnz L_tr"); p+=4; nt+=1
            out.append(l); p+=isz(l)
        A.L=out; assert nt<=4
        kk=A.L.index("    TOUCH_HERE")
        TT=["    s_mov_b64 vcc, -1"]
        for i in range(1,nt): TT+=[f"    s_cmp_eq_u32 s25, {i}",f"    s_cbranch_scc1 L_t{i}"]
        TT+=["    s_branch L_t0","L_tr:","    s_mov_b64 vcc, 0"]
        A.L[kk:kk+1]=TT if nt else []
    nv=F0+4*NSLOT
    A(f""".section .rodata,"a"
.p2align 6
.amdhsa_kernel {KN}
.amdhsa_next_free_vgpr {nv}
.amdhsa_next_free_sgpr 100
.amdhsa_accum_offset {nv}
.amdhsa_group_segment_fixed_size 0
.amdhsa_kernarg_size 72
.amdhsa_user_sgpr_count 2
.amdhsa_user_sgpr_kernarg_segment_ptr 1
.amdhsa_system_sgpr_workgroup_id_x 1
.amdhsa_float_denorm_mode_32 3
.end_amdhsa_kernel""")
    if jit:
        out=[]; nb=0
        for l in A.L:
            if l.strip()=='s_barrier':
                nb+=1; pre_,post_=jit(nb)
                def dl(spec,tag):
                    if not spec: return []
                    w,n=spec
                    return ["    s_cselect_b32 s98, 1, 0",f"    s_and_b32 s99, s25, {w[0]}",f"    s_cmp_eq_u32 s99, {w[1]}",f"    s_cbranch_scc0 L_j{tag}",f"    s_sleep {n}",f"L_j{tag}:","    s_cmp_eq_u32 s98, 1"]
                out+=dl(pre_,f"a{nb}")+[l]+dl(post_,f"b{nb}")
            else: out.append(l)
        A.L=out
    return A.text(), 512, LDS

def build_all(cfgs, base={}, out='args.txt'):
    from build import build
    args=[]
    for k,c in cfgs.items():
        t,blk,lds=gen(**{**base,**c})
        open(k+'.s','w').write(t); build(k+'.s')
        args.append(f"{k}.co {KN} 256 {blk} {lds}")
    open(out,'w').write(" ".join(args))
    print(", ".join('"work/'+k+'.co"' for k in cfgs))
```
